```python
import torch

def _softmax(x, axis=-1):
    return torch.softmax(x, dim=axis)
def _gelu(x):
    return torch.nn.functional.gelu(x, approximate="tanh")
def _silu(x):
    return torch.nn.functional.silu(x)
def _sigmoid(x):
    return torch.sigmoid(x)
def _layernorm(x, axis=-1, eps=1e-5):
    m = x.mean(dim=axis, keepdim=True)
    v = x.var(dim=axis, keepdim=True, unbiased=False)
    return (x - m) / torch.sqrt(v + eps)
def _scatter_add(tgt, idx, src, axis=0):
    return tgt.clone().index_add_(axis, idx, src)
def _segment_sum(src, seg, n):
    out = torch.zeros((n,) + src.shape[1:], dtype=src.dtype)
    return out.index_add_(0, seg, src)
def _pad(x, pw):
    flat = tuple(v for pair in reversed(pw) for v in pair)
    return torch.nn.functional.pad(x, flat)

kernel_name = 'interleave_layers__ssm_conv_h3__mixer_channel_mlp__prompt'

def setup_inputs():

    _w = (lambda a: (lambda t: t.to(torch.bfloat16) if t.is_floating_point() else t)(torch.as_tensor(a)))
    def _A_setup():
        B, S, D = 1, 2048, 512
        ks = 4
        return {
            "q": _w((lambda *s: torch.randn(*s, dtype=torch.bfloat16) * 0.05)(B, S, D)),
            "k": _w((lambda *s: torch.randn(*s, dtype=torch.bfloat16) * 0.4)(B, S, D)),
            "v": _w((lambda *s: torch.randn(*s, dtype=torch.bfloat16) * 0.4)(B, S, D)),
            "shift_k": _w((lambda *s: torch.randn(*s, dtype=torch.bfloat16) * 0.4)(D, ks) * 0.5),
            "ssm_k": _w((lambda *s: torch.randn(*s, dtype=torch.bfloat16) * 0.4)(D, S) * (1.0 / S ** 0.5)),
            "ssm_D": _w((lambda *s: torch.randn(*s, dtype=torch.bfloat16) * 0.4)(D)),
        }
    _A_in = _A_setup()

    def _B_setup():
        B, S, D, F = 1, 2048, 512, 1792
        return {
            "x": _w((lambda *s: torch.randn(*s, dtype=torch.bfloat16) * 0.05)(B, S, D)),
            "w1": _w((lambda *s: torch.randn(*s, dtype=torch.bfloat16) * 0.8)(D, F) * (D ** -0.5)),
            "b1": _w((lambda *s: torch.randn(*s, dtype=torch.bfloat16) * 0.8)(F)),
            "w2": _w((lambda *s: torch.randn(*s, dtype=torch.bfloat16) * 0.8)(F, D) * (F ** -0.5)),
            "b2": _w((lambda *s: torch.randn(*s, dtype=torch.bfloat16) * 0.2)(D)),
        }
    _B_in = _B_setup()

    return {
        "A_q": _A_in["q"],
        "A_k": _A_in["k"],
        "A_v": _A_in["v"],
        "A_shift_k": _A_in["shift_k"],
        "A_ssm_k": _A_in["ssm_k"],
        "A_ssm_D": _A_in["ssm_D"],
        "B_x": _B_in["x"],
        "B_w1": _B_in["w1"],
        "B_b1": _B_in["b1"],
        "B_w2": _B_in["w2"],
        "B_b2": _B_in["b2"],
    }

def reference(A_q, A_k, A_v, A_shift_k, A_ssm_k, A_ssm_D, B_x, B_w1, B_b1, B_w2, B_b2):
    def _A_ref(q, k, v, shift_k, ssm_k, ssm_D):
        B, S, D = q.shape
        ks = shift_k.shape[-1]
        k_pad = _pad(k, ((0, 0), (ks - 1, 0), (0, 0)))
        k_shift = torch.zeros_like(k)
        for t in range(ks):
            k_shift = k_shift + k_pad[:, t:t + S, :] * shift_k[:, ks - 1 - t][None, None, :]
        kv = k_shift * v
        L = 2 * S
        kv_pad = _pad(kv, ((0, 0), (0, S), (0, 0)))
        kf_pad = _pad(ssm_k, ((0, 0), (0, S)))
        kv_f = (lambda x, axes=(-2,-1): torch.fft.rfft2(x.float(), dim=axes))(kv_pad[:, None, :, :], axes=(1, 2))
        kf_f = (lambda x, axes=(-2,-1): torch.fft.rfft2(x.float(), dim=axes))(kf_pad[:, None, :], axes=(1, 2))
        kf_f = (lambda x, *d: x.permute(*d))(kf_f, 1, 2, 0)
        y_f = kv_f * kf_f[None, :, :, :]
        y = (lambda x, s, axes=(-2,-1): torch.fft.irfft2(x, s=s, dim=axes).to(torch.bfloat16))(y_f, (1, L), axes=(1, 2))[:, 0, :S, :]
        y = y + kv * ssm_D[None, None, :]
        return q * y

    def _B_ref(x, w1, b1, w2, b2):
        y = _layernorm(x, axis=-1)
        h = _gelu(torch.einsum("bsd,df->bsf", y, w1) + b1)
        return torch.einsum("bsf,fd->bsd", h, w2) + b2

    x = A_q
    x = x + _A_ref(_layernorm(x, axis=-1), A_k, A_v, A_shift_k, A_ssm_k, A_ssm_D)
    x = x + _B_ref(_layernorm(x, axis=-1), B_w1, B_b1, B_w2, B_b2)
    x = x + _A_ref(_layernorm(x, axis=-1), A_k, A_v, A_shift_k, A_ssm_k, A_ssm_D)
    x = x + _B_ref(_layernorm(x, axis=-1), B_w1, B_b1, B_w2, B_b2)
    return x
```

```python
import re

TRANS = ("v_exp_f32", "v_rcp_f32", "v_rsq_f32", "v_sqrt_f32", "v_log_f32", "v_sin_f32", "v_cos_f32")
RMW = ("v_fmac_f32", "v_dot2c_f32_bf16", "v_fmac_f32_e32", "v_pk_fmac_f16")
NO_DST_S = ("s_cmp", "s_waitcnt", "s_barrier", "s_branch", "s_cbranch", "s_nop", "s_sleep", "s_setprio",
            "s_endpgm", "s_bitcmp", "s_setreg")

_reg = re.compile(r"^(v|a|s)(\d+)$")
_rng = re.compile(r"^(v|a|s)\[(\d+):(\d+)\]$")


def regs_of(op):
    op = op.strip()
    neg = op.lstrip("-")
    if neg.startswith("abs(") and neg.endswith(")"):
        neg = neg[4:-1]
    if neg.startswith("|") and neg.endswith("|"):
        neg = neg[1:-1]
    m = _reg.match(neg)
    if m:
        return {(m.group(1), int(m.group(2)))}
    m = _rng.match(neg)
    if m:
        return {(m.group(1), i) for i in range(int(m.group(2)), int(m.group(3)) + 1)}
    if neg == "vcc":
        return {("s", 106), ("s", 107)}
    if neg == "vcc_lo":
        return {("s", 106)}
    if neg == "vcc_hi":
        return {("s", 107)}
    if neg == "exec":
        return {("s", 126), ("s", 127)}
    if neg == "m0":
        return {("s", 124)}
    return set()


def split_ops(rest):
    ops, depth, cur = [], 0, ""
    for ch in rest:
        if ch in "[(":
            depth += 1
        if ch in "])":
            depth -= 1
        if ch == "," and depth == 0:
            ops.append(cur.strip())
            cur = ""
        else:
            cur += ch
    if cur.strip():
        ops.append(cur.strip())
    return ops


class Info:
    __slots__ = ("text", "mn", "kind", "wr", "rd", "srcA", "srcB", "srcC", "passes", "dpp", "trans", "states",
                 "store_data", "lds_dma", "perm", "readlane", "sdwa", "vaddr_s")

    def __init__(self, text):
        self.text = text
        self.wr = set(); self.rd = set()
        self.srcA = self.srcB = self.srcC = set()
        self.passes = 0; self.dpp = False; self.trans = False; self.states = 1
        self.store_data = set(); self.lds_dma = False; self.perm = False; self.readlane = False
        self.sdwa = False; self.vaddr_s = set()
        t = text.split(";")[0].strip()
        parts = t.split(None, 1)
        self.mn = mn = parts[0]
        rest = parts[1] if len(parts) > 1 else ""
        ops = split_ops(rest)
        mods = ""
        if ops:
            last = ops[-1].split()
            ops[-1] = last[0]
            mods = " ".join(last[1:])
        base = re.sub(r"_(e32|e64|dpp|sdwa)$", "", mn)
        if mn.startswith("v_mfma"):
            self.kind = "mfma"
            self.wr = regs_of(ops[0]); self.srcA = regs_of(ops[1]); self.srcB = regs_of(ops[2]); self.srcC = regs_of(ops[3])
            self.rd = self.srcA | self.srcB | self.srcC
            self.passes = 8 if "32x32x16" in mn else 4
        elif mn.startswith("v_"):
            self.kind = "valu"
            self.dpp = ("_dpp" in mn) or ("row_" in mods) or ("quad_perm" in mods) or ("wave_" in mods)
            self.sdwa = "_sdwa" in mn
            self.trans = base in TRANS
            if base.startswith("v_permlane") and "swap" in base:
                self.perm = True
                self.wr = regs_of(ops[0]) | regs_of(ops[1]); self.rd = set(self.wr)
            elif base.startswith("v_cmp"):
                self.wr = regs_of(ops[0])
                for o in ops[1:]: self.rd |= regs_of(o)
            elif base in ("v_readfirstlane_b32", "v_readlane_b32"):
                self.readlane = True
                self.wr = regs_of(ops[0])
                for o in ops[1:]: self.rd |= regs_of(o)
            elif base in ("v_add_co_u32", "v_sub_co_u32", "v_addc_co_u32", "v_subb_co_u32"):
                self.wr = regs_of(ops[0]) | regs_of(ops[1])
                for o in ops[2:]: self.rd |= regs_of(o)
            else:
                self.wr = regs_of(ops[0])
                for o in ops[1:]: self.rd |= regs_of(o)
                if base in RMW or self.dpp or self.sdwa:
                    self.rd |= self.wr
                if base == "v_cndmask_b32" and len(ops) == 3:
                    self.rd |= regs_of("vcc")
        elif mn.startswith("ds_"):
            self.kind = "ds"
            if mn.startswith("ds_read") or mn.startswith("ds_bpermute") or mn.startswith("ds_swizzle"):
                self.wr = regs_of(ops[0])
                for o in ops[1:]: self.rd |= regs_of(o)
            else:
                for o in ops: self.rd |= regs_of(o)
        elif mn.startswith("buffer_") or mn.startswith("global_"):
            self.kind = "vmem"
            if mn in ("buffer_wbl2", "buffer_inv"):
                pass
            elif mn.startswith("buffer_load") and (" lds" in " " + mods):
                self.lds_dma = True
                for o in ops: self.rd |= regs_of(o)
                self.rd |= regs_of("m0")
            elif "_load" in mn:
                self.wr = regs_of(ops[0])
                for o in ops[1:]: self.rd |= regs_of(o)
            elif "_store" in mn:
                for o in ops: self.rd |= regs_of(o)
                d = ops[0] if mn.startswith("buffer") else ops[1]
                if "x3" in mn or "x4" in mn:
                    self.store_data = regs_of(d)
            elif "_atomic" in mn:
                for o in ops: self.rd |= regs_of(o)
                if "sc0" in mods:
                    self.wr = regs_of(ops[0])
            self.vaddr_s = {r for r in self.rd if r[0] == "s"}
        elif mn.startswith("s_"):
            self.kind = "salu"
            if mn == "s_nop":
                self.states = int(ops[0], 0) + 1
            elif any(mn.startswith(p) for p in NO_DST_S):
                for o in ops: self.rd |= regs_of(o)
            elif mn.startswith("s_load") or mn.startswith("s_memtime") or mn.startswith("s_memrealtime"):
                self.wr = regs_of(ops[0])
                for o in ops[1:]: self.rd |= regs_of(o)
            else:
                self.wr = regs_of(ops[0])
                for o in ops[1:]: self.rd |= regs_of(o)
                if "saveexec" in mn:
                    self.wr |= regs_of("exec")
        else:
            raise ValueError("unknown instruction: " + text)


def need(prev, cur):
    n = 0
    pv = prev.kind; cv = cur.kind
    vw = {r for r in prev.wr if r[0] in "va"}
    sw = {r for r in prev.wr if r[0] == "s"}
    if pv == "valu":
        if cv == "mfma" and (vw & cur.rd): n = max(n, 2)
        if cv == "vmem" and (sw & cur.vaddr_s): n = max(n, 5)
        if cv == "valu" and (sw & cur.rd):
            n = max(n, 4 if (cur.mn.startswith("v_readlane") or cur.mn.startswith("v_writelane")) else 2)
        if cv == "valu" and cur.readlane and (vw & cur.rd): n = max(n, 1)
        if cv == "valu" and prev.trans and (vw & cur.rd) and not cur.trans: n = max(n, 1)
        if cv == "valu" and prev.trans and (vw & cur.rd) and cur.trans: n = max(n, 1)
        if cv == "valu" and (cur.dpp or cur.perm) and (vw & cur.rd): n = max(n, 2)
        if cv == "valu" and prev.sdwa and (vw & (cur.rd | cur.wr)): n = max(n, 1)
        if cv == "salu" and (sw & cur.rd): n = max(n, 1)
    if pv == "mfma":
        p = prev.passes
        d = prev.wr
        if cv == "mfma":
            if d & (cur.srcA | cur.srcB): n = max(n, 8 if p == 4 else 12)
            if d & cur.srcC:
                if d == cur.srcC and cur.passes == p: pass
                else: n = max(n, 6 if p == 4 else 10)
            if (d & cur.wr) and not (d == cur.srcC and d == cur.wr):
                n = max(n, 8 if p == 4 else 12)
        elif cv in ("valu", "vmem", "ds"):
            if d & (cur.rd | cur.wr): n = max(n, 8 if p == 4 else 12)
        if cv == "valu" and (prev.srcC & cur.wr): n = max(n, 3 if p == 4 else 7)
    if pv == "vmem" and prev.store_data:
        if prev.store_data & cur.wr: n = max(n, 2)
    if pv == "salu" and ("s", 124) in prev.wr and cv == "vmem" and cur.lds_dma: n = max(n, 1)
    return n


class Asm:
    def __init__(self):
        self.lines = []

    def I(self, s):
        for ln in s.strip().split("\n"):
            ln = ln.strip()
            if ln:
                self.lines.append(("i", ln))

    def L(self, name):
        self.lines.append(("l", name))

    def C(self, s):
        self.lines.append(("c", s))

    def raw(self, s):
        self.lines.append(("r", s))

    def finish(self):
        out = []
        hist = []
        nn = 0
        for kind, text in self.lines:
            if kind == "i":
                inf = Info(text)
                req = 0
                dist = 0
                for prev in reversed(hist):
                    r = need(prev, inf)
                    if r > dist:
                        req = max(req, r - dist)
                    dist += prev.states
                    if dist >= 16:
                        break
                if req > 0:
                    k = req
                    while k > 0:
                        c = min(k, 16)
                        out.append(f"  s_nop {c-1}")
                        hist.append(Info(f"s_nop {c-1}"))
                        k -= c
                    nn += 1
                out.append("  " + text)
                hist.append(inf)
                if len(hist) > 40:
                    hist = hist[-24:]
            elif kind == "l":
                out.append(text + ":")
            elif kind == "c":
                out.append("  ; " + text)
            else:
                out.append(text)
        self.n_nops = nn
        return "\n".join(out) + "\n"
```

```python
import sys, struct
from asmlib import Asm

NAME = "interleave_layers__ssm_conv_h3__mixer_channel_mlp__prompt_kernel"

WS_FLAGS = 0x1000
WS_PROF = 0x8000
WS_KVT = 0x200000
WS_Y = 0x400000
WS_Z1 = 0x600000
WS_Z3 = 0x800000
WS_O1 = 0xA00000
WS_X3 = 0xC00000
WS_H1 = 0xE00000
WS_H3 = 0x1600000
WS_SIZE = 0x2000000
HOP_REG, HOP_A, HOP_B, HOP_C1, HOP_D1, HOP_E, HOP_C2, HOP_D2 = range(8)

CS = 4160
L_TOEP = 0
L_UPL = 2 * 8 * CS
PS = 1536
L_XCH = L_UPL + 2 * 4 * PS
L_W1 = 0
L_SCR = 114688
LDS_BYTES = 163840

sX, sR, sW, sT = "s4", "s5", "s6", "s7"
SRD_Q, SRD_K, SRD_V, SRD_H = "s[8:11]", "s[12:15]", "s[16:19]", "s[20:23]"
SRD_W1, SRD_W2, SRD_WS, SRD_OUT = "s[24:27]", "s[28:31]", "s[32:35]", "s[36:39]"
SRD_SK, SRD_B1, SRD_B2 = "s[40:43]", "s[44:47]", "s[48:51]"
sSLOT = "s52"
sD0, sD1 = "s53", "s54"
sC4096 = "s55"
sSPIN = "s56"
sT0, sT1, sT2, sT3, sT4, sT5 = "s57", "s58", "s59", "s60", "s61", "s62"
sMASKLO = "s63"
sMASKHI = "s92"
sRH, sCC, sRQ, sNT = "s93", "s94", "s95", "s96"
sEPS = "s97"
sPA, sPB = "s98", "s99"
sLAYER = "s100"

vTID, vLANE = "v0", "v1"


def f32bits(x):
    return "0x%08x" % struct.unpack("<I", struct.pack("<f", x))[0]


class Gen:
    def __init__(self, stop=99, prof=False, sc1=True):
        self.a = Asm()
        self.stop = stop
        self.prof = prof
        self.nlabel = 0
        self.nstamp = 0
        self.st = " sc1"

    def lab(self, base):
        self.nlabel += 1
        return f"L_{base}_{self.nlabel}"

    def I(self, s): self.a.I(s)
    def C(self, s): self.a.C(s)

    def stamp(self, name):
        if not self.prof: return
        i = self.nstamp; self.nstamp += 1
        self.C(f"stamp {i}: {name}")
        self.I(f"s_memtime s[98:99]\ns_waitcnt lgkmcnt(0)\nv_writelane_b32 v255, s98, {i}")
        self.stamps.append(name)

    def signal(self, hop):
        a = self
        skip = a.lab("sig")
        a.I("s_waitcnt vmcnt(0) lgkmcnt(0)\ns_barrier")
        a.I(f"s_cmp_lg_u32 {sW}, 0\ns_cbranch_scc1 {skip}")
        a.I(f"s_lshl_b32 {sT0}, {sSLOT}, 2\ns_add_u32 {sT0}, {sT0}, {WS_FLAGS + hop * 0x400}")
        a.I(f"v_mov_b32 v2, {sT}")
        a.I("s_mov_b64 exec, 1")
        a.I(f"buffer_store_dword v2, off, {SRD_WS}, {sT0} sc1")
        a.I("s_mov_b64 exec, -1")
        a.a.L(skip)

    def poll(self, hop, first_slot_sgpr, n):
        a = self
        loop = a.lab("poll"); done = a.lab("polld")
        a.I(f"s_lshl_b32 {sT0}, {first_slot_sgpr}, 2\ns_add_u32 {sT0}, {sT0}, {WS_FLAGS + hop * 0x400}")
        if n <= 64:
            a.I(f"v_min_u32 v2, {n - 1}, {vLANE}\nv_lshlrev_b32 v2, 2, v2")
        else:
            assert n == 256
            a.I(f"v_lshlrev_b32 v2, 2, {vTID}")
        a.I(f"s_mov_b32 {sSPIN}, 0x40000")
        a.a.L(loop)
        a.I(f"buffer_load_dword v3, v2, {SRD_WS}, {sT0} offen sc1")
        a.I("s_waitcnt vmcnt(0)")
        a.I(f"v_cmp_ne_u32 vcc, {sT}, v3")
        a.I(f"s_cbranch_vccz {done}")
        a.I(f"s_sub_u32 {sSPIN}, {sSPIN}, 1\ns_cbranch_scc1 {done}")
        a.I("s_sleep 1")
        a.I(f"s_branch {loop}")
        a.a.L(done)
        if n == 256:
            a.I("s_barrier")

    def maybe_stop(self, k):
        if self.stop == k:
            self.I("s_branch L_end")

    def prologue(self):
        a = self
        a.I("s_cmp_ge_u32 s2, 256\ns_cbranch_scc1 L_exit")
        a.I("s_load_dwordx16 s[64:79], s[0:1], 0\ns_load_dwordx8 s[80:87], s[0:1], 64\ns_load_dwordx4 s[88:91], s[0:1], 96")
        if self.prof:
            a.I("v_mov_b32 v255, 0")
            a.I("s_memrealtime s[98:99]\ns_waitcnt lgkmcnt(0)\nv_writelane_b32 v255, s98, 63")
            a.stamp("start")
        a.I(f"s_and_b32 {sX}, s2, 7\ns_lshr_b32 {sR}, s2, 3")
        a.I(f"v_lshrrev_b32 v2, 6, v0\nv_and_b32 {vLANE}, 63, v0")
        a.I(f"v_readfirstlane_b32 {sW}, v2")
        a.I(f"s_lshl_b32 {sSLOT}, {sX}, 5\ns_add_u32 {sSLOT}, {sSLOT}, {sR}")
        a.I(f"s_mov_b32 {sC4096}, 4096\ns_mov_b32 {sMASKLO}, 0xffff\ns_mov_b32 {sMASKHI}, 0xffff0000")
        a.I(f"s_mov_b32 {sEPS}, {f32bits(1e-5)}")
        a.I(f"s_lshr_b32 {sRH}, {sR}, 4\ns_and_b32 {sCC}, {sR}, 15")
        a.I(f"s_lshr_b32 {sRQ}, {sR}, 3\ns_and_b32 {sNT}, {sR}, 7")
        a.I("s_waitcnt lgkmcnt(0)")

        def srd(n, lo, size):
            b = int(n[2:n.index(":")])
            a.I(f"s_mov_b32 s{b}, s{lo}\ns_mov_b32 s{b+1}, s{lo+1}\ns_mov_b32 s{b+2}, {size}\ns_mov_b32 s{b+3}, 0x20000")
        srd(SRD_K, 66, 2097152); srd(SRD_V, 68, 2097152); srd(SRD_SK, 70, 4096)
        srd(SRD_H, 72, 2097152); srd(SRD_Q, 64, 2097152); srd(SRD_WS, 90, WS_SIZE)
        srd(SRD_W1, 78, 512 * 1792 * 2); srd(SRD_B1, 80, 1792 * 2); srd(SRD_W2, 82, 1792 * 512 * 2)
        srd(SRD_B2, 84, 1024); srd(SRD_OUT, 86, 2097152)
        a.I(f"s_load_dword {sT}, s[90:91], 0")
        a.I(f"s_lshl_b32 {sT0}, {sX}, 7\ns_lshl_b32 {sT1}, {sR}, 2\ns_add_u32 {sT0}, {sT0}, {sT1}")
        a.I(f"s_load_dword {sD0}, s[74:75], {sT0}")

    def p0_loads(self):
        a = self
        a.I(f"v_and_b32 v2, 31, {vTID}\nv_lshrrev_b32 v3, 5, {vTID}")
        a.I(f"s_lshl_b32 {sT0}, {sR}, 16\ns_lshl_b32 {sT1}, {sX}, 7\ns_add_u32 {sT0}, {sT0}, {sT1}")
        a.I(f"v_lshlrev_b32 v4, 13, v3\nv_lshl_add_u32 v4, v2, 2, v4\nv_add_u32 v4, {sT0}, v4")
        a.I("v_subrev_u32 v5, 3072, v4")
        a.I("v_cmp_gt_u32 vcc, 1024, v4")
        a.I("v_mov_b32 v6, 0x40000000")
        a.I("v_cndmask_b32 v5, v5, v6, vcc")
        for j in range(3):
            a.I(f"buffer_load_dword v{8+j}, v5, {SRD_K}, 0 offen offset:{j*1024}")
        for j in range(8):
            so = "0" if j < 4 else sC4096
            a.I(f"buffer_load_dword v{11+j}, v4, {SRD_K}, {so} offen offset:{(j%4)*1024}")
        for j in range(8):
            so = "0" if j < 4 else sC4096
            a.I(f"buffer_load_dword v{20+j}, v4, {SRD_V}, {so} offen offset:{(j%4)*1024}")
        a.I(f"s_lshl_b32 {sT0}, {sX}, 9\nv_lshlrev_b32 v6, 4, v2")
        a.I(f"buffer_load_dwordx4 v[28:31], v6, {SRD_SK}, {sT0} offen")
        a.I(f"v_lshlrev_b32 v6, 4, {vTID}\nv_sub_u32 v7, 4080, v6\nv_sub_u32 v6, 4064, v6")
        a.I(f"v_cmp_eq_u32 vcc, 255, {vTID}\nv_mov_b32 v32, 0x40000000\nv_cndmask_b32 v6, v6, v32, vcc")
        a.I(f"s_lshl_b32 {sT0}, {sX}, 18\ns_lshl_b32 {sT1}, {sR}, 13\ns_add_u32 {sT0}, {sT0}, {sT1}\ns_add_u32 {sT1}, {sT0}, 4096")
        a.I(f"buffer_load_dwordx4 v[40:43], v6, {SRD_H}, {sT0} offen")
        a.I(f"buffer_load_dwordx4 v[44:47], v7, {SRD_H}, {sT0} offen")
        a.I(f"buffer_load_dwordx4 v[48:51], v6, {SRD_H}, {sT1} offen")
        a.I(f"buffer_load_dwordx4 v[52:55], v7, {SRD_H}, {sT1} offen")
        self.rowaddr("v33", "v34")
        a.I(f"s_lshl_b32 {sT0}, {sX}, 18\ns_lshl_b32 {sT1}, {sR}, 13\ns_add_u32 {sT0}, {sT0}, {sT1}")
        for i, off in enumerate((0, 32, 512, 544)):
            a.I(f"buffer_load_dwordx2 a[{224+2*i}:{225+2*i}], v33, {SRD_Q}, {sT0} offen offset:{off}")

    def rowaddr(self, vd, vt):
        a = self
        a.I(f"v_lshrrev_b32 {vd}, 5, {vTID}")
        a.I(f"v_lshlrev_b32 {vd}, 10, {vd}")
        a.I(f"v_bfe_u32 {vt}, {vTID}, 2, 3\nv_lshl_add_u32 {vd}, {vt}, 6, {vd}")
        a.I(f"v_and_b32 {vt}, 3, {vTID}\nv_lshl_add_u32 {vd}, {vt}, 3, {vd}")

    def p0_compute(self):
        a = self
        a.I("s_waitcnt vmcnt(8)")
        for c in range(2):
            for h in range(2):
                src = 28 + 2 * c + h
                a.I(f"v_lshlrev_b32 v{56+4*c+2*h}, 16, v{src}\nv_and_b32 v{57+4*c+2*h}, {sMASKHI}, v{src}")
        for j in range(11):
            a.I(f"v_lshlrev_b32 v{64+j}, 16, v{8+j}\nv_and_b32 v{76+j}, {sMASKHI}, v{8+j}")
        for c in range(2):
            kb = 64 + 12 * c
            wb = 56 + 4 * c
            for j in range(8):
                d = 88 + 8 * c + j
                a.I(f"v_mul_f32 v{d}, v{kb+j+3}, v{wb}")
                for i in range(1, 4):
                    a.I(f"v_fmac_f32 v{d}, v{kb+j+3-i}, v{wb+i}")
        for j in range(8):
            a.I(f"v_lshlrev_b32 v{64+j}, 16, v{20+j}\nv_and_b32 v{76+j}, {sMASKHI}, v{20+j}")
        for c in range(2):
            for j in range(8):
                a.I(f"v_mul_f32 v{88+8*c+j}, v{88+8*c+j}, v{64+12*c+j}")
        for c in range(2):
            for j in range(4):
                a.I(f"v_cvt_pk_bf16_f32 v{8+4*c+j}, v{88+8*c+2*j}, v{88+8*c+2*j+1}")
        a.I(f"v_lshlrev_b32 v4, 13, v2\nv_lshl_add_u32 v4, v3, 4, v4")
        a.I(f"s_lshl_b32 {sT0}, {sX}, 18\ns_lshl_b32 {sT1}, {sR}, 8\ns_add_u32 {sT0}, {sT0}, {sT1}\ns_add_u32 {sT0}, {sT0}, {WS_KVT}")
        a.I(f"buffer_store_dwordx4 v[8:11], v4, {SRD_WS}, {sT0} offen{self.st}")
        a.I(f"buffer_store_dwordx4 v[12:15], v4, {SRD_WS}, {sT0} offen offset:128{self.st}")

    def toeplitz_build(self):
        a = self
        a.I("v_mov_b32 v56, 0\nv_mov_b32 v57, 0\nv_mov_b32 v58, 0\nv_mov_b32 v59, 0")
        a.I(f"v_lshrrev_b32 v2, 5, {vTID}\nv_mul_u32_u24 v2, {PS}, v2\nv_and_b32 v3, 31, {vTID}\nv_lshl_add_u32 v2, v3, 4, v2\nv_add_u32 v2, {L_UPL}, v2")
        a.I(f"ds_write_b128 v2, v[56:59]")
        a.I(f"v_lshrrev_b32 v2, 2, {vLANE}\nv_mul_u32_u24 v2, {CS}, v2\nv_and_b32 v3, 3, {vLANE}\nv_lshl_add_u32 v2, v3, 4, v2")
        a.I(f"ds_write_b128 v2, v[56:59] offset:{L_TOEP + 4096}")
        a.I(f"v_lshlrev_b32 v2, 4, {vTID}")
        for c in range(2):
            W = lambda k: f"v{40+8*c+k}"
            for i in range(6):
                a.I(f"v_alignbit_b32 v{60+i}, {W(7-i)}, {W(7-i)}, 16")
            for i in range(1, 7):
                a.I(f"v_alignbit_b32 v{65+i}, {W(7-i)}, {W(7-i)}, 16")
            for i in range(6):
                k = 7 - i
                a.I(f"v_bfi_b32 v{72+i}, {sMASKLO}, {W(k)}, {W(k-1)}")
            for i in range(1, 7):
                k = 7 - i
                a.I(f"v_bfi_b32 v{77+i}, {sMASKLO}, {W(k)}, {W(k-1)}")
            for q in range(8):
                aa = q // 2
                if q % 2 == 0:
                    base = (60 + aa) if aa % 2 == 0 else (65 + aa)
                else:
                    base = (72 + aa) if aa % 2 == 0 else (77 + aa)
                assert base % 2 == 0
                off = L_TOEP + (c * 8 + q) * CS
                a.I(f"ds_write_b128 v2, v[{base}:{base+3}] offset:{off}")

    def u_dma(self):
        a = self
        a.I(f"v_lshrrev_b32 v2, 1, {vLANE}\nv_lshlrev_b32 v2, 8, v2\nv_and_b32 v3, 1, {vLANE}\nv_lshl_add_u32 v2, v3, 6, v2")
        a.I(f"s_and_b32 {sT1}, {sW}, 1\ns_lshr_b32 {sT2}, {sW}, 1")
        a.I(f"s_lshl_b32 {sT0}, {sSLOT}, 13\ns_add_u32 {sT0}, {sT0}, {WS_KVT}")
        a.I(f"s_lshl_b32 {sT3}, {sT1}, 7\ns_add_u32 {sT0}, {sT0}, {sT3}")
        a.I(f"s_lshl_b32 {sT3}, {sT2}, 5\ns_add_u32 {sT0}, {sT0}, {sT3}")
        a.I(f"s_mul_i32 {sT3}, {sT1}, {4*PS}\ns_mul_i32 {sT4}, {sT2}, {2*PS}\ns_add_u32 {sT3}, {sT3}, {sT4}\ns_add_u32 {sT3}, {sT3}, {L_UPL+512}")
        a.I(f"s_mov_b32 m0, {sT3}")
        a.I(f"buffer_load_dwordx4 v2, {SRD_WS}, {sT0} offen sc1 lds")
        a.I(f"s_add_u32 m0, {sT3}, {PS}\ns_add_u32 {sT0}, {sT0}, 16")
        a.I(f"buffer_load_dwordx4 v2, {SRD_WS}, {sT0} offen sc1 lds")
        a.I("s_waitcnt vmcnt(0) lgkmcnt(0)\ns_barrier")

    def conv_main(self):
        a = self
        a.I(f"s_and_b32 {sT1}, {sW}, 1\ns_lshr_b32 {sT2}, {sW}, 1")
        a.I(f"v_and_b32 v4, 7, {vLANE}\nv_sub_u32 v4, 7, v4\nv_mul_u32_u24 v2, {CS}, v4")
        a.I(f"v_bfe_u32 v4, {vLANE}, 3, 2\nv_lshlrev_b32 v4, 4, v4\nv_sub_u32 v2, v2, v4")
        a.I(f"v_lshrrev_b32 v5, 5, {vLANE}\nv_lshl_add_u32 v2, v5, 4, v2")
        a.I(f"s_mul_i32 {sT3}, {sT1}, {8*CS}\ns_lshl_b32 {sT4}, {sT2}, 10\ns_sub_u32 {sT3}, {sT3}, {sT4}\ns_add_u32 {sT3}, {sT3}, {L_TOEP+1072}")
        a.I(f"v_add_u32 v2, {sT3}, v2")
        a.I(f"v_mul_u32_u24 v3, {PS}, v5\nv_and_b32 v4, 31, {vLANE}\nv_lshl_add_u32 v3, v4, 4, v3")
        a.I(f"s_mul_i32 {sT3}, {sT1}, {4*PS}\ns_lshl_b32 {sT4}, {sT2}, 8\ns_sub_u32 {sT3}, {sT3}, {sT4}\ns_add_u32 {sT3}, {sT3}, {L_UPL+17*16}")
        a.I(f"v_add_u32 v3, {sT3}, v3")
        for i in range(64, 96):
            a.I(f"v_mov_b32 v{i}, 0")

        def reads(tp):
            b = 96 + 16 * (tp % 3)
            if tp % 2 == 1:
                boff = (15 - (tp - 1) // 2) * 16
            else:
                boff = 2 * PS + (15 - tp // 2) * 16
            a.I(f"ds_read_b128 v[{b}:{b+3}], v2 offset:{3040-32*tp}")
            a.I(f"ds_read_b128 v[{b+4}:{b+7}], v3 offset:{boff+512}")
            a.I(f"ds_read_b128 v[{b+8}:{b+11}], v3 offset:{boff}")
            a.I(f"ds_read_b128 v[{b+12}:{b+15}], v2 offset:{992-32*tp}")
        reads(0); reads(1)
        for tp in range(32):
            if tp + 2 < 32:
                reads(tp + 2)
                a.I("s_waitcnt lgkmcnt(8)")
            elif tp + 1 < 32:
                a.I("s_waitcnt lgkmcnt(4)")
            else:
                a.I("s_waitcnt lgkmcnt(0)")
            b = 96 + 16 * (tp % 3)
            a.I(f"v_mfma_f32_32x32x16_bf16 v[80:95], v[{b}:{b+3}], v[{b+4}:{b+7}], v[80:95]")
            a.I(f"v_mfma_f32_32x32x16_bf16 v[64:79], v[{b}:{b+3}], v[{b+8}:{b+11}], v[64:79]")
            a.I(f"v_mfma_f32_32x32x16_bf16 v[80:95], v[{b+12}:{b+15}], v[{b+8}:{b+11}], v[80:95]")

    def conv_epilogue(self):
        a = self
        a.I(f"s_lshl_b32 {sT0}, {sW}, 13\ns_add_u32 {sT0}, {sT0}, {L_XCH}\nv_lshlrev_b32 v2, 4, {vLANE}\nv_add_u32 v3, {sT0}, v2")
        for dst in range(4):
            part, rh = dst >> 1, dst & 1
            b = 64 + 16 * part + 8 * rh
            for h in range(2):
                a.I(f"ds_write_b128 v3, v[{b+4*h}:{b+4*h+3}] offset:{dst*2048 + h*1024}")
        a.I(f"s_and_b32 {sT1}, {sW}, 1\ns_lshr_b32 {sT2}, {sW}, 1")
        a.I(f"v_and_b32 v4, 31, {vLANE}\nv_lshlrev_b32 v4, 4, v4\nv_lshrrev_b32 v5, 5, {vLANE}\nv_lshl_add_u32 v4, v5, 3, v4")
        a.I(f"s_mul_i32 {sT3}, {sT1}, {2*PS}\ns_lshl_b32 {sT4}, {sT2}, 9\ns_add_u32 {sT3}, {sT3}, {sT4}\ns_add_u32 {sT3}, {sT3}, {L_UPL+512}")
        a.I(f"v_add_u32 v4, {sT3}, v4")
        for c in range(2):
            for g in range(2):
                d = 96 + 4 * c + 2 * g
                a.I(f"ds_read_b64 v[{d}:{d+1}], v4 offset:{c*4*PS + g*PS}")
        a.I("s_waitcnt lgkmcnt(0)\ns_barrier")
        a.I(f"s_lshl_b32 {sT0}, {sW}, 11\ns_add_u32 {sT0}, {sT0}, {L_XCH}\nv_add_u32 v3, {sT0}, v2")
        for src in range(4):
            for h in range(2):
                d = 104 + 8 * src + 4 * h
                a.I(f"ds_read_b128 v[{d}:{d+3}], v3 offset:{src*8192 + h*1024}")
        a.I(f"s_lshl_b32 {sT4}, {sD0}, 16\ns_and_b32 {sT5}, {sD0}, {sMASKHI}")
        for c in range(2):
            for g in range(2):
                for h in range(2):
                    s = 96 + 4 * c + 2 * g + h
                    d = 64 + 8 * c + 4 * g + 2 * h
                    a.I(f"v_lshlrev_b32 v{d}, 16, v{s}\nv_and_b32 v{d+1}, {sMASKHI}, v{s}")
        a.I("s_waitcnt lgkmcnt(0)")
        for c in range(2):
            sd = sT4 if c == 0 else sT5
            for e in range(8):
                p0 = 104 + 8 * c + e
                p1 = 104 + 8 * (c + 2) + e
                a.I(f"v_add_f32 v{p0}, v{p0}, v{p1}")
                a.I(f"v_fmac_f32 v{p0}, {sd}, v{64+8*c+e}")
        for e in range(8):
            a.I(f"v_cvt_pk_bf16_f32 v{80+e}, v{104+e}, v{112+e}")
        a.I(f"v_and_b32 v4, 31, {vLANE}\nv_lshlrev_b32 v4, 15, v4\nv_lshl_add_u32 v4, v5, 4, v4")
        a.I(f"s_lshl_b32 {sT3}, {sT2}, 20\ns_lshl_b32 {sT4}, {sT1}, 14\ns_add_u32 {sT3}, {sT3}, {sT4}")
        a.I(f"s_lshl_b32 {sT4}, {sSLOT}, 5\ns_add_u32 {sT3}, {sT3}, {sT4}\ns_add_u32 {sT3}, {sT3}, {WS_Y}")
        a.I(f"buffer_store_dwordx4 v[80:83], v4, {SRD_WS}, {sT3} offen sc1")
        a.I(f"s_add_u32 {sT3}, {sT3}, 8192")
        a.I(f"buffer_store_dwordx4 v[84:87], v4, {SRD_WS}, {sT3} offen sc1")

    def w1_stage(self):
        a = self
        a.I(f"s_mov_b32 {sT0}, 4682")
        for i in range(7):
            a.I(f"v_add_u32 v10, {64*i}, {vLANE}\nv_mul_u32_u24 v11, {sT0}, v10\nv_lshrrev_b32 v11, 16, v11")
            a.I(f"v_mul_u32_u24 v12, 14, v11\nv_sub_u32 v12, v10, v12")
            a.I(f"v_mul_u32_u24 v11, 3584, v11\nv_lshl_add_u32 v{2+i}, v12, 4, v11")
        a.I(f"s_mul_i32 {sT1}, {sW}, {128*3584}\ns_mul_i32 {sT2}, {sCC}, 224\ns_add_u32 {sT1}, {sT1}, {sT2}")
        a.I(f"s_mul_i32 {sT2}, {sW}, 28672")
        for g in range(4):
            for i in range(7):
                a.I(f"s_add_u32 m0, {sT2}, {L_W1 + g*7168 + i*1024}")
                a.I(f"buffer_load_dwordx4 v{2+i}, {SRD_W1}, {sT1} offen lds")
            if g < 3:
                a.I(f"s_add_u32 {sT1}, {sT1}, {32*3584}")

    def w1_convert(self):
        a = self
        a.I(f"v_lshrrev_b32 v2, 2, {vLANE}\nv_mul_u32_u24 v2, 224, v2\nv_and_b32 v3, 3, {vLANE}\nv_lshl_add_u32 v2, v3, 3, v2")
        a.I(f"s_mul_i32 {sT2}, {sW}, 28672\nv_add_u32 v2, {sT2}, v2")
        a.I(f"v_lshlrev_b32 v3, 4, {vLANE}\nv_add_u32 v3, {sT2}, v3")
        n = 0
        for tl in range(4):
            for aa in range(7):
                d = 16 + (tl * 7 + aa) * 4
                for hh in range(2):
                    off = L_W1 + (32 * tl + 16 * hh) * 224 + 32 * aa
                    a.I(f"ds_read_b64_tr_b16 v[{d+2*hh}:{d+2*hh+1}], v2 offset:{off}")
        a.I("s_waitcnt lgkmcnt(0)")
        for tl in range(4):
            for aa in range(7):
                d = 16 + (tl * 7 + aa) * 4
                a.I(f"ds_write_b128 v3, v[{d}:{d+3}] offset:{L_W1 + tl*7168 + aa*1024}")

    def w2_rows(self, kap_local):
        cp, i = divmod(kap_local, 7)
        base = 224 * cp
        if i < 3: starts = [base + 32 * i + 8 * g for g in range(4)]
        elif i < 6: starts = [base + 112 + 32 * (i - 3) + 8 * g for g in range(4)]
        else: starts = [base + 96, base + 104, base + 208, base + 216]
        return starts

    def w2_loads(self, k0, k1, vbase):
        a = self
        a.I(f"v_lshrrev_b32 v2, 3, {vLANE}\nv_lshlrev_b32 v2, 10, v2\nv_and_b32 v3, 7, {vLANE}\nv_lshl_add_u32 v2, v3, 4, v2")
        a.I(f"s_lshl_b32 {sT0}, {sNT}, 7\nv_add_u32 v2, {sT0}, v2")
        a.I(f"s_mul_i32 {sT1}, {sW}, {448*1024}")
        n = 0
        for k in range(k0, k1):
            for g, st in enumerate(self.w2_rows(k)):
                d = vbase + n * 4; n += 1
                a.I(f"s_add_u32 {sT0}, {sT1}, {st*1024}")
                a.I(f"buffer_load_dwordx4 v[{d}:{d+3}], v2, {SRD_W2}, {sT0} offen")

    def w2_convert(self, k0, k1, vbase):
        a = self
        a.I(f"v_lshrrev_b32 v2, 3, {vLANE}\nv_mul_u32_u24 v2, 160, v2\nv_and_b32 v3, 7, {vLANE}\nv_lshl_add_u32 v2, v3, 4, v2")
        a.I(f"s_mul_i32 {sT0}, {sW}, 10240\ns_add_u32 {sT0}, {sT0}, {L_SCR}\nv_add_u32 v2, {sT0}, v2")
        a.I(f"v_lshrrev_b32 v3, 2, {vLANE}\nv_mul_u32_u24 v3, 160, v3\nv_and_b32 v4, 3, {vLANE}\nv_lshl_add_u32 v3, v4, 3, v3\nv_add_u32 v3, {sT0}, v3")
        n = 0
        for k in range(k0, k1):
            buf = (k % 2) * 5120
            for g in range(4):
                d = vbase + n * 4; n += 1
                a.I(f"ds_write_b128 v2, v[{d}:{d+3}] offset:{buf + g*1280}")
            for aa in range(4):
                for hh in range(2):
                    ar = (k * 4 + aa) * 4 + 2 * hh
                    a.I(f"ds_read_b64_tr_b16 a[{ar}:{ar+1}], v3 offset:{buf + hh*16*160 + aa*32}")
        a.I("s_waitcnt lgkmcnt(0)")

    def allreduce32(self, ra, rb, tmp1, tmp2):
        a = self
        for sh in (8, 4, 2, 1):
            a.I(f"v_add_f32_dpp {ra}, {ra}, {ra} row_ror:{sh} row_mask:0xf bank_mask:0xf")
            a.I(f"v_add_f32_dpp {rb}, {rb}, {rb} row_ror:{sh} row_mask:0xf bank_mask:0xf")
        a.I(f"v_mov_b32 {tmp1}, {ra}\nv_mov_b32 {tmp2}, {rb}")
        a.I(f"v_permlane16_swap_b32 {ra}, {tmp1}\nv_permlane16_swap_b32 {rb}, {tmp2}")
        a.I(f"v_add_f32 {ra}, {ra}, {tmp1}\nv_add_f32 {rb}, {rb}, {tmp2}")

    def stats(self, xb, vs, vq):
        a = self
        a.I(f"v_add_f32 {vs}, v{xb}, v{xb+1}\nv_mul_f32 {vq}, v{xb}, v{xb}\nv_fmac_f32 {vq}, v{xb+1}, v{xb+1}")
        for e in range(2, 16):
            a.I(f"v_add_f32 {vs}, {vs}, v{xb+e}\nv_fmac_f32 {vq}, v{xb+e}, v{xb+e}")
        self.allreduce32(vs, vq, "v6", "v7")
        a.I(f"v_mul_f32 {vs}, {f32bits(1/512)}, {vs}\nv_mul_f32 {vq}, {f32bits(1/512)}, {vq}")
        a.I(f"v_fma_f32 {vq}, -{vs}, {vs}, {vq}\nv_max_f32 {vq}, 0, {vq}")

    def r_core(self, zbase_const, x3store):
        a = self
        self.stats(16, "v4", "v5")
        a.I(f"v_add_f32 v5, {sEPS}, v5\nv_rsq_f32 v5, v5")
        for e in range(16):
            a.I(f"v_sub_f32 v{48+e}, v{16+e}, v4")
        for e in range(16):
            a.I(f"v_mul_f32 v{48+e}, v{48+e}, v5")
        for e in range(16):
            a.I(f"v_fmac_f32 v{16+e}, v{48+e}, v{32+e}")
        for j in range(8):
            a.I(f"v_cvt_pk_bf16_f32 v{48+j}, v{16+2*j}, v{16+2*j+1}")
        for j in range(8):
            a.I(f"v_lshlrev_b32 v{16+2*j}, 16, v{48+j}\nv_and_b32 v{16+2*j+1}, {sMASKHI}, v{48+j}")
            a.I(f"v_accvgpr_write_b32 a{224+j}, v{48+j}")
        if x3store:
            a.I(f"v_lshrrev_b32 v8, 5, {vTID}\nv_lshlrev_b32 v8, 10, v8\nv_and_b32 v9, 31, {vLANE}\nv_lshl_add_u32 v8, v9, 4, v8")
            a.I(f"s_lshl_b32 {sT0}, {sSLOT}, 13\ns_add_u32 {sT0}, {sT0}, {WS_X3}")
            a.I(f"buffer_store_dwordx4 v[48:51], v8, {SRD_WS}, {sT0} offen{self.st}")
            a.I(f"buffer_store_dwordx4 v[52:55], v8, {SRD_WS}, {sT0} offen offset:512{self.st}")
        self.stats(16, "v4", "v5")
        a.I(f"v_add_f32 v6, {sEPS}, v5\nv_rsq_f32 v7, v6\nv_rcp_f32 v6, v6")
        a.I(f"v_mul_f32 v6, v5, v6\nv_add_f32 v6, {sEPS}, v6\nv_rsq_f32 v6, v6\nv_mul_f32 v5, v7, v6")
        for e in range(16):
            a.I(f"v_sub_f32 v{16+e}, v{16+e}, v4")
        for e in range(16):
            a.I(f"v_mul_f32 v{16+e}, v{16+e}, v5")
        for j in range(8):
            a.I(f"v_cvt_pk_bf16_f32 v{56+j}, v{16+2*j}, v{16+2*j+1}")
        a.I(f"v_bfe_u32 v8, {vTID}, 2, 3\nv_lshlrev_b32 v8, 10, v8\nv_and_b32 v9, 3, {vTID}\nv_lshl_add_u32 v8, v9, 8, v8")
        a.I(f"v_lshrrev_b32 v9, 5, {vTID}\nv_lshl_add_u32 v8, v9, 4, v8")
        a.I(f"s_lshl_b32 {sT0}, {sX}, 18\ns_lshr_b32 {sT1}, {sR}, 1\ns_lshl_b32 {sT1}, {sT1}, 14\ns_add_u32 {sT0}, {sT0}, {sT1}")
        a.I(f"s_and_b32 {sT1}, {sR}, 1\ns_lshl_b32 {sT1}, {sT1}, 7\ns_add_u32 {sT0}, {sT0}, {sT1}\ns_add_u32 {sT0}, {sT0}, {zbase_const}")
        a.I(f"buffer_store_dwordx4 v[56:59], v8, {SRD_WS}, {sT0} offen{self.st}")
        a.I(f"s_add_u32 {sT0}, {sT0}, 8192")
        a.I(f"buffer_store_dwordx4 v[60:63], v8, {SRD_WS}, {sT0} offen{self.st}")

    def r1(self):
        a = self
        a.I(f"v_lshlrev_b32 v2, 5, {vTID}\ns_lshl_b32 {sT0}, {sSLOT}, 13\ns_add_u32 {sT0}, {sT0}, {WS_Y}")
        a.I(f"buffer_load_dwordx4 v[8:11], v2, {SRD_WS}, {sT0} offen sc1")
        a.I(f"buffer_load_dwordx4 v[12:15], v2, {SRD_WS}, {sT0} offen offset:16 sc1")
        a.I(f"v_lshlrev_b32 v3, 2, {vTID}\nv_add_u32 v3, {L_SCR}, v3")
        a.I("s_waitcnt vmcnt(0)")
        for j in range(8):
            a.I(f"ds_write_b32 v3, v{8+j} offset:{j*1024}")
        self.rowaddr("v4", "v5")
        a.I(f"v_add_u32 v4, {L_SCR}, v4")
        a.I("s_waitcnt lgkmcnt(0)\ns_barrier")
        for i, off in enumerate((0, 32, 512, 544)):
            a.I(f"ds_read_b64 v[{8+2*i}:{9+2*i}], v4 offset:{off}")
        for j in range(8):
            a.I(f"v_accvgpr_read_b32 v{48+j}, a{224+j}")
        for j in range(8):
            a.I(f"v_lshlrev_b32 v{16+2*j}, 16, v{48+j}\nv_and_b32 v{16+2*j+1}, {sMASKHI}, v{48+j}")
        a.I("s_waitcnt lgkmcnt(0)")
        for j in range(8):
            a.I(f"v_lshlrev_b32 v{32+2*j}, 16, v{8+j}\nv_and_b32 v{32+2*j+1}, {sMASKHI}, v{8+j}")
            a.I(f"v_accvgpr_write_b32 a{232+j}, v{8+j}")
        self.r_core(WS_Z1, False)

    def r2(self):
        a = self
        a.I(f"v_lshrrev_b32 v8, 5, {vTID}\nv_lshlrev_b32 v8, 10, v8\nv_and_b32 v9, 31, {vLANE}\nv_lshl_add_u32 v8, v9, 4, v8")
        a.I(f"s_lshl_b32 {sT0}, {sSLOT}, 13\ns_add_u32 {sT0}, {sT0}, {WS_O1}")
        a.I(f"buffer_load_dwordx4 v[8:11], v8, {SRD_WS}, {sT0} offen sc1")
        a.I(f"buffer_load_dwordx4 v[12:15], v8, {SRD_WS}, {sT0} offen offset:512 sc1")
        for j in range(8):
            a.I(f"v_accvgpr_read_b32 v{48+j}, a{224+j}\nv_accvgpr_read_b32 v{56+j}, a{232+j}")
        for j in range(8):
            a.I(f"v_lshlrev_b32 v{16+2*j}, 16, v{48+j}\nv_and_b32 v{16+2*j+1}, {sMASKHI}, v{48+j}")
            a.I(f"v_lshlrev_b32 v{32+2*j}, 16, v{56+j}\nv_and_b32 v{32+2*j+1}, {sMASKHI}, v{56+j}")
        a.I("s_waitcnt vmcnt(0)")
        for j in range(8):
            a.I(f"v_lshlrev_b32 v{48+2*j}, 16, v{8+j}\nv_and_b32 v{48+2*j+1}, {sMASKHI}, v{8+j}")
        for e in range(16):
            a.I(f"v_add_f32 v{16+e}, v{16+e}, v{48+e}")
        for j in range(8):
            a.I(f"v_cvt_pk_bf16_f32 v{48+j}, v{16+2*j}, v{16+2*j+1}")
        for j in range(8):
            a.I(f"v_lshlrev_b32 v{16+2*j}, 16, v{48+j}\nv_and_b32 v{16+2*j+1}, {sMASKHI}, v{48+j}")
        self.r_core(WS_Z3, True)

    def gemm1_pre(self):
        a = self
        a.I(f"v_lshrrev_b32 v2, 4, {vLANE}\nv_lshlrev_b32 v2, 3, v2\ns_mul_i32 {sT0}, {sCC}, 224")
        for aa in range(7):
            a.I(f"buffer_load_dwordx2 v[{64+2*aa}:{65+2*aa}], v2, {SRD_B1}, {sT0} offen offset:{32*aa}")
        a.I("s_waitcnt vmcnt(0)")
        for aa in range(7):
            for rt in range(2):
                d = 8 + (aa * 2 + rt) * 4
                for h in range(2):
                    s = 64 + 2 * aa + h
                    a.I(f"v_lshlrev_b32 v{d+2*h}, 16, v{s}\nv_and_b32 v{d+2*h+1}, {sMASKHI}, v{s}")

    def gemm1(self, zbase, hbase):
        a = self
        ZB = 120
        a.I(f"v_lshlrev_b32 v2, 4, {vLANE}")
        a.I(f"s_lshl_b32 {sT0}, {sX}, 18\ns_lshl_b32 {sT1}, {sRH}, 17\ns_add_u32 {sT0}, {sT0}, {sT1}")
        a.I(f"s_lshl_b32 {sT1}, {sW}, 15\ns_add_u32 {sT0}, {sT0}, {sT1}\ns_add_u32 {sT0}, {sT0}, {zbase}")
        a.I(f"s_add_u32 {sT1}, {sT0}, 16384")
        for tg in range(4):
            for tl in range(4):
                t = tg * 4 + tl
                for rt in range(2):
                    d = ZB + (t * 2 + rt) * 4
                    so = sT0 if rt == 0 else sT1
                    a.I(f"buffer_load_dwordx4 v[{d}:{d+3}], v2, {SRD_WS}, {so} offen offset:{tl*1024} sc1")
            if tg < 3:
                a.I(f"s_add_u32 {sT0}, {sT0}, 4096\ns_add_u32 {sT1}, {sT1}, 4096")
        WB = 64

        def wreads(t):
            b = WB + 28 * (t % 2)
            for aa in range(7):
                off = L_W1 + (t >> 2) * 28672 + (t & 3) * 7168 + aa * 1024
                if off > 65535:
                    a.I(f"ds_read_b128 v[{b+4*aa}:{b+4*aa+3}], v3 offset:{off-65536}")
                else:
                    a.I(f"ds_read_b128 v[{b+4*aa}:{b+4*aa+3}], v2 offset:{off}")
        a.I("v_add_u32 v3, 0x10000, v2")
        wreads(0)
        for t in range(16):
            if t + 1 < 16:
                wreads(t + 1)
                a.I(f"s_waitcnt vmcnt({30-2*t}) lgkmcnt(7)")
            else:
                a.I("s_waitcnt vmcnt(0) lgkmcnt(0)")
            b = WB + 28 * (t % 2)
            for aa in range(7):
                for rt in range(2):
                    d = 8 + (aa * 2 + rt) * 4
                    z = ZB + (t * 2 + rt) * 4
                    a.I(f"v_mfma_f32_16x16x32_bf16 v[{d}:{d+3}], v[{b+4*aa}:{b+4*aa+3}], v[{z}:{z+3}], v[{d}:{d+3}]")
        self.stamp("g1 mfma done")
        c1 = -2.0 * 0.7978845608028654 * 1.4426950408889634
        c2 = c1 * 0.044715
        a.I(f"v_mov_b32 v64, {f32bits(c2)}")
        for aa in range(7):
            for rt in range(2):
                d = 8 + (aa * 2 + rt) * 4
                t0 = 68
                for j in range(4): a.I(f"v_mul_f32 v{t0+j}, v{d+j}, v{d+j}")
                for j in range(4): a.I(f"v_fmaak_f32 v{t0+j}, v64, v{t0+j}, {f32bits(c1)}")
                for j in range(4): a.I(f"v_mul_f32 v{t0+j}, v{t0+j}, v{d+j}")
                for j in range(4): a.I(f"v_exp_f32 v{t0+j}, v{t0+j}")
                for j in range(4): a.I(f"v_add_f32 v{t0+j}, 1.0, v{t0+j}")
                for j in range(4): a.I(f"v_rcp_f32 v{t0+j}, v{t0+j}")
                for j in range(4): a.I(f"v_mul_f32 v{d+j}, v{d+j}, v{t0+j}")
        a.I(f"s_lshl_b32 {sT0}, {sX}, 4\ns_lshl_b32 {sT1}, {sRH}, 3\ns_add_u32 {sT0}, {sT0}, {sT1}\ns_lshl_b32 {sT1}, {sW}, 1\ns_add_u32 {sT0}, {sT0}, {sT1}")
        a.I(f"s_mul_i32 {sT0}, {sT0}, 57344\ns_add_u32 {sT0}, {sT0}, {hbase}")
        a.I(f"s_lshr_b32 {sT1}, {sCC}, 1\ns_mul_i32 {sT1}, {sT1}, 7168\ns_add_u32 {sT0}, {sT0}, {sT1}")
        a.I(f"s_and_b32 {sT2}, {sCC}, 1\ns_mul_i32 {sT1}, {sT2}, 3072\ns_add_u32 {sT1}, {sT0}, {sT1}")
        a.I(f"s_lshl_b32 {sT2}, {sT2}, 3\ns_add_u32 {sT2}, {sT0}, {sT2}\ns_add_u32 {sT2}, {sT2}, 6144")
        for rt in range(2):
            for i in range(3):
                p = 72 + (rt * 3 + i) * 4
                for h in range(2):
                    d = 8 + ((2 * i + h) * 2 + rt) * 4
                    a.I(f"v_cvt_pk_bf16_f32 v{p+2*h}, v{d}, v{d+1}\nv_cvt_pk_bf16_f32 v{p+2*h+1}, v{d+2}, v{d+3}")
                a.I(f"buffer_store_dwordx4 v[{p}:{p+3}], v2, {SRD_WS}, {sT1} offen offset:{i*1024}{self.st}")
            d = 8 + (6 * 2 + rt) * 4
            p = 96 + 2 * rt
            a.I(f"v_cvt_pk_bf16_f32 v{p}, v{d}, v{d+1}\nv_cvt_pk_bf16_f32 v{p+1}, v{d+2}, v{d+3}")
            a.I(f"buffer_store_dwordx2 v[{p}:{p+1}], v2, {SRD_WS}, {sT2} offen{self.st}")
            if rt == 0:
                a.I(f"s_add_u32 {sT1}, {sT1}, 57344\ns_add_u32 {sT2}, {sT2}, 57344")

    def gemm2(self, hbase, final):
        a = self
        a.I(f"v_lshlrev_b32 v2, 4, {vLANE}")
        a.I(f"s_lshl_b32 {sT0}, {sX}, 4\ns_lshl_b32 {sT1}, {sRQ}, 2\ns_add_u32 {sT0}, {sT0}, {sT1}\ns_mul_i32 {sT0}, {sT0}, 57344")
        a.I(f"s_mul_i32 {sT1}, {sW}, 14336\ns_add_u32 {sT0}, {sT0}, {sT1}\ns_add_u32 {sT0}, {sT0}, {hbase}")

        def hloads(idx):
            b = 40 + 56 * (idx % 3)
            a.I(f"s_add_u32 {sT1}, {sW}, {1+idx}\ns_and_b32 {sT1}, {sT1}, 3\ns_mul_i32 {sT1}, {sT1}, 57344\ns_add_u32 {sT1}, {sT1}, {sT0}")
            for k in range(14):
                if k % 4 == 0 and k > 0:
                    a.I(f"s_add_u32 {sT1}, {sT1}, 4096")
                a.I(f"buffer_load_dwordx4 v[{b+4*k}:{b+4*k+3}], v2, {SRD_WS}, {sT1} offen offset:{(k%4)*1024} sc1")
        hloads(0); hloads(1); hloads(2)
        extra = 0
        if final:
            a.I(f"v_and_b32 v4, 15, {vLANE}\nv_lshlrev_b32 v4, 10, v4\nv_lshrrev_b32 v5, 4, {vLANE}\nv_lshl_add_u32 v4, v5, 4, v4")
            a.I(f"s_lshl_b32 {sT2}, {sX}, 18\ns_lshl_b32 {sT3}, {sRQ}, 16\ns_add_u32 {sT2}, {sT2}, {sT3}\ns_lshl_b32 {sT3}, {sW}, 14\ns_add_u32 {sT2}, {sT2}, {sT3}")
            a.I(f"s_lshl_b32 {sT3}, {sNT}, 7\ns_add_u32 {sT2}, {sT2}, {sT3}\ns_add_u32 {sT2}, {sT2}, {WS_X3}")
            a.I(f"buffer_load_dwordx4 v[208:211], v4, {SRD_WS}, {sT2} offen sc1")
            a.I(f"buffer_load_dwordx4 v[212:215], v4, {SRD_WS}, {sT2} offen offset:64 sc1")
            extra = 2
        a.I(f"v_lshrrev_b32 v5, 4, {vLANE}\nv_lshlrev_b32 v5, 3, v5\ns_lshl_b32 {sT2}, {sNT}, 7")
        for aa in range(4):
            a.I(f"buffer_load_dwordx2 v[{216+2*aa}:{217+2*aa}], v5, {SRD_B2}, {sT2} offen offset:{32*aa}")
        extra += 4
        a.I(f"v_lshlrev_b32 v3, 4, {vLANE}")
        outstanding = 42 + extra
        for idx in range(4):
            b = 40 + 56 * (idx % 3)
            acc = 8 + 16 * (idx % 2)
            for k in range(14):
                if idx < 3:
                    issued_after = (2 - idx) * 14 + (13 - k) + extra + (14 if idx >= 1 else 0)
                else:
                    issued_after = 13 - k
                a.I(f"s_waitcnt vmcnt({min(issued_after,63)})")
                for aa in range(4):
                    ar = (k * 4 + aa) * 4
                    d = acc + 4 * aa
                    c = "0" if k == 0 else f"v[{d}:{d+3}]"
                    a.I(f"v_mfma_f32_16x16x32_bf16 v[{d}:{d+3}], a[{ar}:{ar+3}], v[{b+4*k}:{b+4*k+3}], {c}")
            if idx == 0:
                hloads(3)
            if idx < 3:
                a.I(f"s_add_u32 {sT1}, {sW}, {1+idx}\ns_and_b32 {sT1}, {sT1}, 3\ns_mul_i32 {sT1}, {sT1}, 12288\ns_add_u32 {sT1}, {sT1}, {L_SCR + (2-idx)*4096}")
                a.I(f"v_add_u32 v4, {sT1}, v3")
                for aa in range(4):
                    a.I(f"ds_write_b128 v4, v[{acc+4*aa}:{acc+4*aa+3}] offset:{aa*1024}")
        self.stamp("g2 mfma done")
        a.I("s_waitcnt lgkmcnt(0)\ns_barrier")
        a.I(f"s_mul_i32 {sT1}, {sW}, 12288\ns_add_u32 {sT1}, {sT1}, {L_SCR}\nv_add_u32 v4, {sT1}, v3")
        for s in range(3):
            for aa in range(4):
                d = 40 + s * 16 + aa * 4
                a.I(f"ds_read_b128 v[{d}:{d+3}], v4 offset:{s*4096 + aa*1024}")
        for aa in range(4):
            for h in range(2):
                s = 216 + 2 * aa + h
                a.I(f"v_lshlrev_b32 v{88+4*aa+2*h}, 16, v{s}\nv_and_b32 v{88+4*aa+2*h+1}, {sMASKHI}, v{s}")
        a.I("s_waitcnt lgkmcnt(0)")
        for e in range(16):
            a.I(f"v_add_f32 v{24+e}, v{24+e}, v{40+e}\nv_add_f32 v{56+e}, v{56+e}, v{72+e}")
        for e in range(16):
            a.I(f"v_add_f32 v{24+e}, v{24+e}, v{56+e}")
        for e in range(16):
            a.I(f"v_add_f32 v{24+e}, v{24+e}, v{88+e}")
        if not final:
            for j in range(8):
                a.I(f"v_cvt_pk_bf16_f32 v{40+j}, v{24+2*j}, v{24+2*j+1}")
            a.I(f"v_and_b32 v4, 15, {vLANE}\nv_lshlrev_b32 v4, 10, v4\nv_lshrrev_b32 v5, 4, {vLANE}\nv_lshl_add_u32 v4, v5, 4, v4")
            a.I(f"s_lshl_b32 {sT2}, {sX}, 18\ns_lshl_b32 {sT3}, {sRQ}, 16\ns_add_u32 {sT2}, {sT2}, {sT3}\ns_lshl_b32 {sT3}, {sW}, 14\ns_add_u32 {sT2}, {sT2}, {sT3}")
            a.I(f"s_lshl_b32 {sT3}, {sNT}, 7\ns_add_u32 {sT2}, {sT2}, {sT3}\ns_add_u32 {sT2}, {sT2}, {WS_O1}")
            a.I(f"buffer_store_dwordx4 v[40:43], v4, {SRD_WS}, {sT2} offen{self.st}")
            a.I(f"buffer_store_dwordx4 v[44:47], v4, {SRD_WS}, {sT2} offen offset:64{self.st}")
        else:
            for j in range(8):
                a.I(f"v_cvt_pk_bf16_f32 v{40+j}, v{24+2*j}, v{24+2*j+1}")
            for j in range(8):
                a.I(f"v_lshlrev_b32 v{24+2*j}, 16, v{40+j}\nv_and_b32 v{24+2*j+1}, {sMASKHI}, v{40+j}")
                a.I(f"v_lshlrev_b32 v{56+2*j}, 16, v{208+j}\nv_and_b32 v{56+2*j+1}, {sMASKHI}, v{208+j}")
            for e in range(16):
                a.I(f"v_add_f32 v{24+e}, v{24+e}, v{56+e}")
            for j in range(8):
                a.I(f"v_cvt_pk_bf16_f32 v{40+j}, v{24+2*j}, v{24+2*j+1}")
            a.I(f"v_and_b32 v4, 15, {vLANE}\nv_lshlrev_b32 v4, 10, v4\nv_lshrrev_b32 v5, 4, {vLANE}\nv_lshl_add_u32 v4, v5, 3, v4")
            a.I(f"s_lshl_b32 {sT2}, {sX}, 18\ns_lshl_b32 {sT3}, {sRQ}, 16\ns_add_u32 {sT2}, {sT2}, {sT3}\ns_lshl_b32 {sT3}, {sW}, 14\ns_add_u32 {sT2}, {sT2}, {sT3}")
            a.I(f"s_lshl_b32 {sT3}, {sNT}, 7\ns_add_u32 {sT2}, {sT2}, {sT3}")
            for aa in range(4):
                a.I(f"buffer_store_dwordx2 v[{40+2*aa}:{41+2*aa}], v4, {SRD_OUT}, {sT2} offen offset:{32*aa}")

    def build(self):
        a = self
        self.stamps = []
        a.prologue()
        a.p0_loads()
        a.I("s_waitcnt lgkmcnt(0)")
        a.I(f"s_and_b32 {sT}, {sT}, 0xfffffff0\ns_add_u32 {sT}, {sT}, 0x9e3779b0")
        a.p0_compute()
        a.stamp("p0 computed")
        a.I("s_waitcnt vmcnt(2)")
        a.toeplitz_build()
        a.signal(HOP_A)
        a.stamp("a signaled")
        a.maybe_stop(1)
        a.I(f"s_lshl_b32 {sT5}, {sX}, 5")
        a.poll(HOP_A, sT5, 32)
        a.stamp("a polled")
        a.u_dma()
        a.stamp("u loaded")
        a.conv_main()
        a.stamp("conv main")
        a.conv_epilogue()
        a.signal(HOP_B)
        a.stamp("b signaled")
        a.maybe_stop(2)
        a.w1_stage()
        a.w2_loads(0, 7, 128)
        a.I("s_waitcnt vmcnt(28)")
        a.w1_convert()
        a.I("s_waitcnt vmcnt(0)")
        a.w2_convert(0, 7, 128)
        a.w2_loads(7, 14, 128)
        a.I("s_waitcnt vmcnt(0)")
        a.w2_convert(7, 14, 128)
        a.stamp("weights staged")
        a.I(f"s_mov_b32 {sT5}, 0")
        a.poll(HOP_B, sT5, 256)
        a.stamp("b polled")
        skip = a.lab("ep")
        a.I(f"s_or_b32 {sT0}, s2, {sW}\ns_cmp_lg_u32 {sT0}, 0\ns_cbranch_scc1 {skip}")
        a.I(f"v_mov_b32 v2, {sT}\ns_mov_b64 exec, 1\nbuffer_store_dword v2, off, {SRD_WS}, 0 sc1\ns_mov_b64 exec, -1")
        a.a.L(skip)
        a.r1()
        a.signal(HOP_C1)
        a.stamp("r1 done")
        a.maybe_stop(3)
        for layer in range(2):
            hopc = HOP_C1 if layer == 0 else HOP_C2
            hopd = HOP_D1 if layer == 0 else HOP_D2
            zb = WS_Z1 if layer == 0 else WS_Z3
            hb = WS_H1 if layer == 0 else WS_H3
            a.gemm1_pre()
            a.I(f"s_lshl_b32 {sT5}, {sX}, 5\ns_lshl_b32 {sT4}, {sRH}, 4\ns_add_u32 {sT5}, {sT5}, {sT4}")
            a.poll(hopc, sT5, 16)
            a.stamp("c polled")
            a.gemm1(zb, hb)
            a.signal(hopd)
            a.stamp("g1 done")
            a.maybe_stop(4 + 3 * layer)
            a.I(f"s_lshl_b32 {sT5}, {sX}, 5\ns_lshl_b32 {sT4}, {sRH}, 4\ns_add_u32 {sT5}, {sT5}, {sT4}")
            a.poll(hopd, sT5, 16)
            a.stamp("d polled")
            a.gemm2(hb, layer == 1)
            if layer == 0:
                a.signal(HOP_E)
                a.stamp("g2 done")
                a.maybe_stop(5)
                a.I(f"s_lshl_b32 {sT5}, {sX}, 5\ns_lshl_b32 {sT4}, {sRQ}, 3\ns_add_u32 {sT5}, {sT5}, {sT4}")
                a.poll(HOP_E, sT5, 8)
                a.stamp("e polled")
                a.r2()
                a.signal(HOP_C2)
                a.stamp("r2 done")
                a.maybe_stop(6)
        a.a.L("L_end")
        if self.prof:
            a.I("s_waitcnt vmcnt(0)")
            a.stamp("end")
            skip = a.lab("pf")
            a.I(f"s_cmp_lg_u32 {sW}, 0\ns_cbranch_scc1 {skip}")
            a.I(f"v_lshlrev_b32 v2, 2, {vLANE}\ns_lshl_b32 {sT0}, {sSLOT}, 8\ns_add_u32 {sT0}, {sT0}, {WS_PROF}")
            a.I(f"buffer_store_dword v255, v2, {SRD_WS}, {sT0} offen")
            a.a.L(skip)
        a.a.L("L_exit")
        a.I("s_endpgm")
        body = a.a.finish()
        hdr = f"""; Fused persistent kernel: conv (MFMA Toeplitz) + 2x (LN, LN, MLP) with in-launch hand-offs
; @launch grid=(256,1,1) block=(256,1,1) lds={LDS_BYTES}
.amdgcn_target "amdgcn-amd-amdhsa--gfx950"
.text
.globl {NAME}
.p2align 8
.type {NAME},@function
{NAME}:
"""
        ftr = f""".section .rodata,"a"
.p2align 6
.amdhsa_kernel {NAME}
  .amdhsa_next_free_vgpr 512
  .amdhsa_next_free_sgpr 102
  .amdhsa_accum_offset 256
  .amdhsa_group_segment_fixed_size 0
  .amdhsa_kernarg_size 112
  .amdhsa_user_sgpr_count 2
  .amdhsa_user_sgpr_kernarg_segment_ptr 1
  .amdhsa_system_sgpr_workgroup_id_x 1
.end_amdhsa_kernel
"""
        return hdr + body + ftr


if __name__ == "__main__":
    import argparse
    ap = argparse.ArgumentParser()
    ap.add_argument("--stop", type=int, default=99)
    ap.add_argument("--prof", action="store_true")
    ap.add_argument("-o", default="k.s")
    args = ap.parse_args()
    g = Gen(stop=args.stop, prof=args.prof)
    txt = g.build()
    open(args.o, "w").write(txt)
    print("lines", txt.count("\n"), "nop insertions", g.a.n_nops, "stamps", g.stamps if args.prof else "")
```

```python
import sys, struct
from asmlib import Asm

NAME = "interleave_layers__ssm_conv_h3__mixer_channel_mlp__prompt_kernel"

WS_FLAGS = 0x1000
WS_PROF = 0x8000
WS_KVT = 0x200000
WS_Y = 0x600000
WS_O = 0xA00000
WS_Z1 = 0xE00000
WS_Z3 = 0x1000000
WS_X3 = 0x1200000
WS_H1 = 0x1400000
WS_H3 = 0x1C00000
WS_SIZE = 0x2400000
HOP_REG, HOP_C1, HOP_D1, HOP_C2, HOP_D2 = range(5)

L_W1 = 0
L_CR = 114688
CS = 4160
L_TOEP = L_CR
L_UPL = L_CR + 2 * 4 * CS
PS = 1536
L_DUMMY = L_UPL + 2 * 4 * PS
L_XCH = L_CR
L_SCR = L_CR
L_YT = L_CR + 40960
L_P0T = 0
L_CT = L_CR + 32768
LDS_BYTES = 163840

sX, sR, sW = "s4", "s5", "s6"
SRD_Q, SRD_K, SRD_V, SRD_H = "s[8:11]", "s[12:15]", "s[16:19]", "s[20:23]"
SRD_W1, SRD_W2, SRD_WS, SRD_OUT = "s[24:27]", "s[28:31]", "s[32:35]", "s[36:39]"
SRD_SK, SRD_B1, SRD_B2 = "s[40:43]", "s[44:47]", "s[48:51]"
sSLOT = "s52"
sD0 = "s53"
sZB = "s54"
sC4096 = "s55"
sSPIN = "s56"
sT0, sT1, sT2, sT3, sT4, sT5 = "s57", "s58", "s59", "s60", "s61", "s62"
sMASKLO = "s63"
sM0, sM1, sM2, sM3 = "s[64:65]", "s[66:67]", "s[68:69]", "s[70:71]"
sHB = "s72"
sMASKHI = "s92"
sRH, sCC, sRQ, sNT = "s93", "s94", "s95", "s96"
sEPS = "s97"
sT, sTH, sTAG = "s98", "s99", "s[98:99]"
sPURE = "s100"
sXCC = "s101"

vTID, vLANE = "v0", "v1"


def f32bits(x):
    return "0x%08x" % struct.unpack("<I", struct.pack("<f", x))[0]


class Gen:
    def __init__(self, stop=99, prof=False, force_slow=False, opts=None):
        self.a = Asm()
        self.stop = stop
        self.prof = prof
        self.nlabel = 0
        self.nstamp = 0
        self.force_slow = force_slow
        self.o = opts or {}

    def lab(self, base):
        self.nlabel += 1
        return f"L_{base}_{self.nlabel}"

    def I(self, s): self.a.I(s)
    def C(self, s): self.a.C(s)

    def stamp(self, name):
        if not self.prof: return
        i = self.nstamp; self.nstamp += 1
        self.C(f"stamp {i}: {name}")
        self.I(f"s_memtime s[0:1]\ns_waitcnt lgkmcnt(0)\nv_writelane_b32 v255, s0, {i}")
        self.stamps.append(name)

    def hstore(self, instrs, local=True):
        a = self
        if not local:
            for i in instrs: a.I(i + " sc1")
            return
        lp = a.lab("stp"); ld = a.lab("std")
        a.I(f"s_cmp_eq_u32 {sPURE}, 1\ns_cbranch_scc1 {lp}")
        for i in instrs: a.I(i + " sc1")
        a.I(f"s_branch {ld}")
        a.a.L(lp)
        for i in instrs: a.I(i)
        a.a.L(ld)

    def signal(self, hop):
        a = self
        skip = a.lab("sig")
        a.I("s_waitcnt vmcnt(0) lgkmcnt(0)\ns_barrier")
        a.I(f"s_cmp_lg_u32 {sW}, 0\ns_cbranch_scc1 {skip}")
        a.I(f"s_lshl_b32 {sT0}, {sSLOT}, 2\ns_add_u32 {sT0}, {sT0}, {WS_FLAGS + hop * 0x400}")
        a.I(f"v_mov_b32 v2, {sT}")
        a.I("s_mov_b64 exec, 1")
        self.hstore([f"buffer_store_dword v2, off, {SRD_WS}, {sT0}"])
        a.I("s_mov_b64 exec, -1")
        a.a.L(skip)

    def poll(self, hop, first_slot_sgpr, n, purity=False):
        a = self
        loop = a.lab("poll"); done = a.lab("polld")
        a.I(f"s_lshl_b32 {sT0}, {first_slot_sgpr}, 2\ns_add_u32 {sT0}, {sT0}, {WS_FLAGS + hop * 0x400}")
        a.I(f"v_min_u32 v2, {n - 1}, {vLANE}\nv_lshlrev_b32 v2, 2, v2")
        a.I(f"s_mov_b32 {sSPIN}, 0x40000")
        a.a.L(loop)
        a.I(f"buffer_load_dword v3, v2, {SRD_WS}, {sT0} offen sc1")
        a.I("s_waitcnt vmcnt(0)")
        if purity:
            a.I(f"v_and_b32 v4, -16, v3\nv_cmp_ne_u32 vcc, {sT}, v4")
        else:
            a.I(f"v_cmp_ne_u32 vcc, {sT}, v3")
        a.I(f"s_cbranch_vccz {done}")
        a.I(f"s_sub_u32 {sSPIN}, {sSPIN}, 1\ns_cbranch_scc1 {done}")
        a.I("s_sleep 1")
        a.I(f"s_branch {loop}")
        a.a.L(done)
        if purity:
            a.I(f"v_and_b32 v4, 15, v3\nv_cmp_ne_u32 vcc, {sXCC}, v4")
            a.I(f"s_cmp_eq_u64 vcc, 0\ns_cselect_b32 {sPURE}, 1, 0")
            if self.force_slow:
                a.I(f"s_mov_b32 {sPURE}, 0")

    def tagpoll(self, vaddr, soff, offs, dst, sleep=2):
        a = self
        loop = a.lab("tp"); done = a.lab("tpd")
        a.I(f"s_mov_b32 {sSPIN}, 0x20000")
        a.a.L(loop)
        for j in range(4):
            a.I(f"buffer_load_dwordx4 v[{dst+4*j}:{dst+4*j+3}], {vaddr}, {SRD_WS}, {soff} offen offset:{offs[j]} sc1")
        a.I("s_waitcnt vmcnt(0)")
        ms = (sM0, sM1, sM2, sM3)
        for j in range(4):
            a.I(f"v_cmp_ne_u64 {ms[j]}, {sTAG}, v[{dst+4*j+2}:{dst+4*j+3}]")
        a.I(f"s_or_b64 {sM0}, {sM0}, {sM1}\ns_or_b64 {sM2}, {sM2}, {sM3}\ns_or_b64 {sM0}, {sM0}, {sM2}")
        a.I(f"s_cbranch_scc0 {done}")
        a.I(f"s_sub_u32 {sSPIN}, {sSPIN}, 1\ns_cbranch_scc1 {done}")
        a.I(f"s_sleep {sleep}")
        a.I(f"s_branch {loop}")
        a.a.L(done)


    def ctag_store(self, src, lds_base_sgpr_setup, vaddr, soffs, local, vtmp=8, wr_addr=None, plain=False):
        a = self
        a.I(lds_base_sgpr_setup)
        if wr_addr is None:
            a.I(f"v_lshlrev_b32 v6, 5, {vLANE}\nv_add_u32 v6, {sT5}, v6")
            a.I(f"ds_write_b128 v6, v[{src}:{src+3}]\nds_write_b128 v6, v[{src+4}:{src+7}] offset:16")
        else:
            wr_addr()
        a.I(f"v_lshlrev_b32 v7, 3, {vLANE}\nv_add_u32 v7, {sT5}, v7")
        for j in range(4):
            a.I(f"ds_read_b64 v[{vtmp+4*j}:{vtmp+4*j+1}], v7 offset:{512*j}")
        a.I("s_waitcnt lgkmcnt(0)")
        st = [f"buffer_store_dwordx4 v[{vtmp+4*j}:{vtmp+4*j+3}], {vaddr}, {SRD_WS}, {soffs[j][0]} offen offset:{soffs[j][1]}" for j in range(4)]
        if plain:
            for x in st: a.I(x)
        else:
            self.hstore(st, local)

    def maybe_stop(self, k):
        if self.stop == k:
            self.I("s_branch L_end")

    def prologue(self):
        a = self
        a.I("s_cmp_ge_u32 s2, 256\ns_cbranch_scc1 L_exit")
        a.I("s_load_dwordx16 s[64:79], s[0:1], 0\ns_load_dwordx8 s[80:87], s[0:1], 64\ns_load_dwordx4 s[88:91], s[0:1], 96")
        if self.prof:
            a.I("v_mov_b32 v255, 0")
            a.I("s_memrealtime s[0:1]\ns_waitcnt lgkmcnt(0)\nv_writelane_b32 v255, s0, 63")
            a.stamp("start")
        a.I(f"s_and_b32 {sX}, s2, 7\ns_lshr_b32 {sR}, s2, 3")
        a.I(f"v_lshrrev_b32 v2, 6, v0\nv_and_b32 {vLANE}, 63, v0")
        a.I(f"v_readfirstlane_b32 {sW}, v2")
        a.I(f"s_lshl_b32 {sSLOT}, {sX}, 5\ns_add_u32 {sSLOT}, {sSLOT}, {sR}")
        a.I(f"s_mov_b32 {sC4096}, 4096\ns_mov_b32 {sMASKLO}, 0xffff\ns_mov_b32 {sMASKHI}, 0xffff0000")
        a.I(f"s_mov_b32 {sEPS}, {f32bits(1e-5)}")
        a.I(f"s_lshr_b32 {sRH}, {sR}, 4\ns_and_b32 {sCC}, {sR}, 15")
        a.I(f"s_lshr_b32 {sRQ}, {sR}, 3\ns_and_b32 {sNT}, {sR}, 7")
        a.I(f"s_getreg_b32 {sXCC}, hwreg(HW_REG_XCC_ID)\ns_and_b32 {sXCC}, {sXCC}, 15\ns_mov_b32 {sPURE}, 0")
        a.I("s_waitcnt lgkmcnt(0)")
        a.stamp("kernarg")

        def srd(n, lo, size):
            b = int(n[2:n.index(":")])
            a.I(f"s_mov_b32 s{b}, s{lo}\ns_mov_b32 s{b+1}, s{lo+1}\ns_mov_b32 s{b+2}, {size}\ns_mov_b32 s{b+3}, 0x20000")
        srd(SRD_K, 66, 2097152); srd(SRD_V, 68, 2097152); srd(SRD_SK, 70, 4096)
        a.I(f"s_load_dword {sT}, s[90:91], 0")
        a.I(f"s_lshl_b32 {sT0}, {sX}, 7\ns_lshl_b32 {sT1}, {sR}, 2\ns_add_u32 {sT0}, {sT0}, {sT1}")
        a.I(f"s_load_dword {sD0}, s[74:75], {sT0}")
        self.kv_loads()
        srd(SRD_H, 72, 2097152); srd(SRD_Q, 64, 2097152); srd(SRD_WS, 90, WS_SIZE)
        srd(SRD_W1, 78, 512 * 1792 * 2); srd(SRD_B1, 80, 1792 * 2); srd(SRD_W2, 82, 1792 * 512 * 2)
        srd(SRD_B2, 84, 1024); srd(SRD_OUT, 86, 2097152)

    def kv_loads(self):
        a = self
        a.I(f"v_and_b32 v2, 31, {vTID}\nv_lshrrev_b32 v3, 5, {vTID}")
        a.I(f"s_lshl_b32 {sT0}, {sR}, 16\ns_lshl_b32 {sT1}, {sX}, 7\ns_add_u32 {sT0}, {sT0}, {sT1}")
        a.I(f"v_lshlrev_b32 v4, 13, v3\nv_lshl_add_u32 v4, v2, 2, v4\nv_add_u32 v4, {sT0}, v4")
        a.I("v_subrev_u32 v5, 3072, v4")
        a.I("v_cmp_gt_u32 vcc, 1024, v4")
        a.I("v_mov_b32 v6, 0x40000000")
        a.I("v_cndmask_b32 v5, v5, v6, vcc")
        for j in range(3):
            a.I(f"buffer_load_dword v{8+j}, v5, {SRD_K}, 0 offen offset:{j*1024}")
        for j in range(8):
            so = "0" if j < 4 else sC4096
            a.I(f"buffer_load_dword v{11+j}, v4, {SRD_K}, {so} offen offset:{(j%4)*1024}")
        for j in range(8):
            so = "0" if j < 4 else sC4096
            a.I(f"buffer_load_dword v{20+j}, v4, {SRD_V}, {so} offen offset:{(j%4)*1024}")
        a.I(f"s_lshl_b32 {sT0}, {sX}, 9\nv_lshlrev_b32 v6, 4, v2")
        a.I(f"buffer_load_dwordx4 v[28:31], v6, {SRD_SK}, {sT0} offen")

    def other_loads(self):
        a = self
        a.I(f"v_lshlrev_b32 v6, 4, {vTID}\nv_sub_u32 v7, 4080, v6\nv_sub_u32 v6, 4064, v6")
        a.I(f"v_cmp_eq_u32 vcc, 255, {vTID}\nv_mov_b32 v32, 0x40000000\nv_cndmask_b32 v6, v6, v32, vcc")
        a.I(f"s_lshl_b32 {sT0}, {sX}, 18\ns_lshl_b32 {sT1}, {sR}, 13\ns_add_u32 {sT0}, {sT0}, {sT1}\ns_add_u32 {sT1}, {sT0}, 4096")
        a.I(f"buffer_load_dwordx4 v[40:43], v6, {SRD_H}, {sT0} offen")
        a.I(f"buffer_load_dwordx4 v[44:47], v7, {SRD_H}, {sT0} offen")
        a.I(f"buffer_load_dwordx4 v[48:51], v6, {SRD_H}, {sT1} offen")
        a.I(f"buffer_load_dwordx4 v[52:55], v7, {SRD_H}, {sT1} offen")
        self.rowaddr("v33", "v34")
        a.I(f"s_lshl_b32 {sT0}, {sSLOT}, 13")
        for i, off in enumerate((0, 32, 64, 96)):
            a.I(f"buffer_load_dwordx2 a[{224+2*i}:{225+2*i}], v33, {SRD_Q}, {sT0} offen offset:{off}")
        if self.o.get("tlb", 0):
            gran = self.o.get("tlb")
            a.I(f"v_lshlrev_b32 v37, {gran}, {vTID}\nv_add_u32 v37, 0x100000, v37")
            a.I(f"buffer_load_dword v38, v37, {SRD_WS}, 0 offen")
            a.I(f"v_lshlrev_b32 v37, {min(gran,16)}, {vLANE}")
            a.I(f"buffer_load_dword v39, v37, {SRD_W1}, 0 offen")
            a.I(f"buffer_load_dword v39, v37, {SRD_W2}, 0 offen")
            a.I(f"buffer_load_dword v39, v37, {SRD_OUT}, 0 offen")
            self.ntlb = 4

    def w1_dma_setup(self):
        a = self
        a.I(f"s_mov_b32 {sT0}, 4682")
        for i in range(7):
            a.I(f"v_add_u32 v34, {64*i}, {vLANE}\nv_mul_u32_u24 v35, {sT0}, v34\nv_lshrrev_b32 v35, 16, v35")
            a.I(f"v_mul_u32_u24 v36, 14, v35\nv_sub_u32 v36, v34, v36")
            a.I(f"v_mul_u32_u24 v35, 3584, v35\nv_lshl_add_u32 v{148+i}, v36, 4, v35")
        a.I(f"s_mul_i32 s73, {sW}, {128*3584}\ns_mul_i32 {sT2}, {sCC}, 224\ns_add_u32 s73, s73, {sT2}")
        a.I(f"s_mul_i32 s74, {sW}, 28672")

    def w1_dma_list(self):
        out = []
        for g in range(4):
            for i in range(7):
                x = f"s_add_u32 m0, s74, {L_W1 + g*7168 + i*1024}\n"
                if g > 0 and i == 0:
                    x = f"s_add_u32 s73, s73, {32*3584}\n" + x
                out.append(x + f"buffer_load_dwordx4 v{148+i}, {SRD_W1}, s73 offen lds")
        return out

    def rowaddr(self, vd, vt):
        a = self
        a.I(f"v_lshrrev_b32 {vd}, 5, {vTID}\nv_lshlrev_b32 {vd}, 10, {vd}")
        a.I(f"v_bfe_u32 {vt}, {vTID}, 2, 3\nv_lshl_add_u32 {vd}, {vt}, 7, {vd}")
        a.I(f"v_and_b32 {vt}, 3, {vTID}\nv_lshl_add_u32 {vd}, {vt}, 3, {vd}")

    def tags_into(self, quads):
        for q in quads:
            self.I(f"v_mov_b32 v{q+2}, {sT}\nv_mov_b32 v{q+3}, {sTH}")

    def p0_compute(self, younger):
        a = self
        self.tags_into((104, 108, 112, 116))
        a.stamp("epoch")
        a.I(f"s_waitcnt vmcnt({younger})")
        a.stamp("kv arrived")
        for c in range(2):
            for h in range(2):
                src = 28 + 2 * c + h
                a.I(f"v_lshlrev_b32 v{56+4*c+2*h}, 16, v{src}\nv_and_b32 v{57+4*c+2*h}, {sMASKHI}, v{src}")
        for j in range(11):
            a.I(f"v_lshlrev_b32 v{64+j}, 16, v{8+j}\nv_and_b32 v{76+j}, {sMASKHI}, v{8+j}")
        for c in range(2):
            kb = 64 + 12 * c
            wb = 56 + 4 * c
            for j in range(8):
                a.I(f"v_mul_f32 v{88+8*c+j}, v{kb+j+3}, v{wb}")
            for i in range(1, 4):
                for j in range(8):
                    a.I(f"v_fmac_f32 v{88+8*c+j}, v{kb+j+3-i}, v{wb+i}")
        for j in range(8):
            a.I(f"v_lshlrev_b32 v{64+j}, 16, v{20+j}\nv_and_b32 v{76+j}, {sMASKHI}, v{20+j}")
        for c in range(2):
            for j in range(8):
                a.I(f"v_mul_f32 v{88+8*c+j}, v{88+8*c+j}, v{64+12*c+j}")
        for c in range(2):
            for j in range(4):
                a.I(f"v_cvt_pk_bf16_f32 v{64+4*c+j}, v{88+8*c+2*j}, v{88+8*c+2*j+1}")
        a.I(f"v_lshrrev_b32 v4, 2, {vLANE}\nv_lshlrev_b32 v4, 14, v4\nv_and_b32 v5, 3, {vLANE}\nv_lshl_add_u32 v4, v5, 4, v4")
        a.I(f"s_lshl_b32 {sT0}, {sX}, 19\ns_lshl_b32 {sT1}, {sR}, 9\ns_add_u32 {sT0}, {sT0}, {sT1}\ns_lshl_b32 {sT1}, {sW}, 7\ns_add_u32 {sT0}, {sT0}, {sT1}")
        a.I(f"s_add_u32 {sT0}, {sT0}, {WS_KVT}\ns_add_u32 {sT1}, {sT0}, {16*16384}")
        self.ctag_store(64, f"s_lshl_b32 {sT5}, {sW}, 11\ns_add_u32 {sT5}, {sT5}, {L_P0T}", "v4",
                        [(sT0, 0), (sT1, 0), (sT0, 64), (sT1, 64)], False, vtmp=104, plain=self.o.get("plain_a"))

    def toeplitz_build(self):
        a = self
        a.I("v_mov_b32 v56, 0\nv_mov_b32 v57, 0\nv_mov_b32 v58, 0\nv_mov_b32 v59, 0")
        a.I(f"v_lshrrev_b32 v2, 5, {vTID}\nv_mul_u32_u24 v2, {PS}, v2\nv_and_b32 v3, 31, {vTID}\nv_lshl_add_u32 v2, v3, 4, v2\nv_add_u32 v2, {L_UPL}, v2")
        a.I(f"ds_write_b128 v2, v[56:59]")
        a.I(f"v_bfe_u32 v2, {vLANE}, 2, 3\nv_mul_u32_u24 v2, {CS}, v2\nv_and_b32 v3, 3, {vLANE}\nv_lshl_add_u32 v2, v3, 4, v2\nv_add_u32 v2, {L_TOEP+4096}, v2")
        a.I(f"ds_write_b128 v2, v[56:59]")
        a.I(f"v_lshlrev_b32 v2, 4, {vTID}\nv_add_u32 v2, {L_TOEP}, v2")
        for c in range(2):
            W = lambda k: f"v{40+8*c+k}"
            b0 = 60 + 20 * c
            for i in range(4): a.I(f"v_alignbit_b32 v{b0+i}, {W(7-i)}, {W(7-i)}, 16")
            for i in range(4): a.I(f"v_alignbit_b32 v{b0+4+i}, {W(6-i)}, {W(6-i)}, 16")
            for i in range(4): a.I(f"v_bfi_b32 v{b0+8+i}, {sMASKLO}, {W(7-i)}, {W(6-i)}")
            for i in range(4): a.I(f"v_bfi_b32 v{b0+12+i}, {sMASKLO}, {W(6-i)}, {W(5-i)}")
            for q, base in ((0, b0), (2, b0 + 4), (1, b0 + 8), (3, b0 + 12)):
                a.I(f"ds_write_b128 v2, v[{base}:{base+3}] offset:{(c * 4 + q) * CS}")

    def hop_a(self):
        a = self
        a.I(f"v_lshlrev_b32 v2, 4, {vLANE}\ns_lshl_b32 {sT0}, {sSLOT}, 14\ns_add_u32 {sT0}, {sT0}, {WS_KVT}\ns_lshl_b32 {sT1}, {sW}, 12\ns_add_u32 {sT0}, {sT0}, {sT1}")
        a.I(f"v_bfe_u32 v3, {vLANE}, 1, 1\nv_mul_u32_u24 v3, {4*PS}, v3\nv_bfe_u32 v4, {vLANE}, 2, 2\nv_mul_u32_u24 v4, {PS}, v4\nv_add_u32 v3, v3, v4")
        a.I(f"v_lshrrev_b32 v4, 4, {vLANE}\nv_lshl_add_u32 v3, v4, 4, v3\nv_and_b32 v4, 1, {vLANE}\nv_lshl_add_u32 v3, v4, 3, v3")
        a.I(f"s_lshl_b32 {sT1}, {sW}, 8\ns_add_u32 {sT1}, {sT1}, {L_UPL+512}\nv_add_u32 v3, {sT1}, v3")
        self.tagpoll("v2", sT0, (0, 1024, 2048, 3072), 8)
        for j in range(4):
            a.I(f"ds_write_b64 v3, v[{8+4*j}:{9+4*j}] offset:{64*j}")
        a.I("s_waitcnt lgkmcnt(0)\ns_barrier")

    def w2_rows(self, kap_local):
        cp, i = divmod(kap_local, 7)
        base = 224 * cp
        if i < 3: starts = [base + 32 * i + 8 * g for g in range(4)]
        elif i < 6: starts = [base + 112 + 32 * (i - 3) + 8 * g for g in range(4)]
        else: starts = [base + 96, base + 104, base + 208, base + 216]
        return starts

    def w2_setup(self, vreg):
        a = self
        a.I(f"v_lshrrev_b32 {vreg}, 3, {vLANE}\nv_lshlrev_b32 {vreg}, 10, {vreg}\nv_and_b32 v5, 7, {vLANE}\nv_lshl_add_u32 {vreg}, v5, 4, {vreg}")
        a.I(f"s_lshl_b32 {sT2}, {sNT}, 7\nv_add_u32 {vreg}, {sT2}, {vreg}")
        a.I(f"s_mul_i32 {sT3}, {sW}, {448*1024}")

    def w2_load_list(self, vreg):
        out = []
        for k in range(14):
            for g, st in enumerate(self.w2_rows(k)):
                d = (k * 4 + g) * 4
                out.append(f"s_add_u32 {sT2}, {sT3}, {st*1024}\nbuffer_load_dwordx4 a[{d}:{d+3}], {vreg}, {SRD_W2}, {sT2} offen")
        return out

    def conv_main(self):
        a = self
        self.w2_setup("v144")
        w2l = self.w2_load_list("v144")
        a.I(f"s_and_b32 {sT1}, {sW}, 1\ns_lshr_b32 {sT4}, {sW}, 1")
        a.I(f"v_and_b32 v4, 3, {vLANE}\nv_sub_u32 v4, 3, v4\nv_mul_u32_u24 v2, {CS}, v4")
        a.I(f"v_bfe_u32 v4, {vLANE}, 2, 3\nv_lshlrev_b32 v4, 3, v4\nv_sub_u32 v2, v2, v4")
        a.I(f"v_lshrrev_b32 v5, 5, {vLANE}\nv_lshl_add_u32 v2, v5, 4, v2")
        a.I(f"s_mul_i32 {sT0}, {sT1}, {4*CS}\ns_lshl_b32 {sT5}, {sT4}, 10\ns_sub_u32 {sT0}, {sT0}, {sT5}\ns_add_u32 {sT0}, {sT0}, {L_TOEP+1080}")
        a.I(f"v_add_u32 v2, {sT0}, v2")
        a.I(f"v_mul_u32_u24 v3, {PS}, v5\nv_and_b32 v4, 31, {vLANE}\nv_lshl_add_u32 v3, v4, 4, v3")
        a.I(f"s_mul_i32 {sT0}, {sT1}, {4*PS}\ns_lshl_b32 {sT5}, {sT4}, 8\ns_sub_u32 {sT0}, {sT0}, {sT5}\ns_add_u32 {sT0}, {sT0}, {L_UPL+17*16}")
        a.I(f"v_add_u32 v3, {sT0}, v3")
        for i in range(64, 96):
            a.I(f"v_mov_b32 v{i}, 0")

        def reads(tp):
            b = 96 + 16 * (tp % 3)
            boff = (15 - (tp - 1) // 2) * 16 if tp % 2 == 1 else 2 * PS + (15 - tp // 2) * 16
            a.I(f"ds_read_b64 v[{b}:{b+1}], v2 offset:{3040-32*tp}")
            a.I(f"ds_read_b64 v[{b+2}:{b+3}], v2 offset:{3048-32*tp}")
            a.I(f"ds_read_b128 v[{b+4}:{b+7}], v3 offset:{boff+512}")
            a.I(f"ds_read_b128 v[{b+8}:{b+11}], v3 offset:{boff}")
            a.I(f"ds_read_b64 v[{b+12}:{b+13}], v2 offset:{992-32*tp}")
            a.I(f"ds_read_b64 v[{b+14}:{b+15}], v2 offset:{1000-32*tp}")
        reads(0); reads(1)
        per = self.o.get("w2_per_step", 2)
        for tp in range(32):
            a.I("s_waitcnt lgkmcnt(6)" if tp + 1 < 32 else "s_waitcnt lgkmcnt(0)")
            b = 96 + 16 * (tp % 3)
            a.I(f"v_mfma_f32_32x32x16_bf16 v[80:95], v[{b}:{b+3}], v[{b+4}:{b+7}], v[80:95]")
            if tp + 2 < 32: reads(tp + 2)
            if w2l and per >= 1: a.I(w2l.pop(0))
            a.I(f"v_mfma_f32_32x32x16_bf16 v[64:79], v[{b}:{b+3}], v[{b+8}:{b+11}], v[64:79]")
            if w2l and per >= 2: a.I(w2l.pop(0))
            a.I(f"v_mfma_f32_32x32x16_bf16 v[80:95], v[{b+12}:{b+15}], v[{b+8}:{b+11}], v[80:95]")
        for x in w2l: a.I(x)

    def conv_epilogue(self):
        a = self
        self.tags_into((144, 148, 152, 156))
        a.I("s_barrier")
        a.I(f"s_lshl_b32 {sT0}, {sW}, 13\ns_add_u32 {sT0}, {sT0}, {L_XCH}\nv_lshlrev_b32 v2, 4, {vLANE}\nv_add_u32 v3, {sT0}, v2")
        for dst in range(4):
            part, rh = dst >> 1, dst & 1
            b = 64 + 16 * part + 8 * rh
            for h in range(2):
                a.I(f"ds_write_b128 v3, v[{b+4*h}:{b+4*h+3}] offset:{dst*2048 + h*1024}")
        a.I(f"s_and_b32 {sT1}, {sW}, 1\ns_lshr_b32 {sT2}, {sW}, 1")
        a.I(f"v_and_b32 v4, 31, {vLANE}\nv_lshlrev_b32 v4, 4, v4\nv_lshrrev_b32 v5, 5, {vLANE}\nv_lshl_add_u32 v4, v5, 3, v4")
        a.I(f"s_mul_i32 {sT3}, {sT1}, {2*PS}\ns_lshl_b32 {sT4}, {sT2}, 9\ns_add_u32 {sT3}, {sT3}, {sT4}\ns_add_u32 {sT3}, {sT3}, {L_UPL+512}")
        a.I(f"v_add_u32 v4, {sT3}, v4")
        for c in range(2):
            for g in range(2):
                d = 96 + 4 * c + 2 * g
                a.I(f"ds_read_b64 v[{d}:{d+1}], v4 offset:{c*4*PS + g*PS}")
        a.I("s_waitcnt lgkmcnt(0)\ns_barrier")
        a.I(f"s_lshl_b32 {sT0}, {sW}, 11\ns_add_u32 {sT0}, {sT0}, {L_XCH}\nv_add_u32 v3, {sT0}, v2")
        for src in range(4):
            for h in range(2):
                d = 104 + 8 * src + 4 * h
                a.I(f"ds_read_b128 v[{d}:{d+3}], v3 offset:{src*8192 + h*1024}")
        a.I(f"s_lshl_b32 {sT4}, {sD0}, 16\ns_and_b32 {sT5}, {sD0}, {sMASKHI}")
        for c in range(2):
            for g in range(2):
                for h in range(2):
                    s = 96 + 4 * c + 2 * g + h
                    d = 64 + 8 * c + 4 * g + 2 * h
                    a.I(f"v_lshlrev_b32 v{d}, 16, v{s}\nv_and_b32 v{d+1}, {sMASKHI}, v{s}")
        a.I("s_waitcnt lgkmcnt(0)")
        for c in range(2):
            sd = sT4 if c == 0 else sT5
            for e in range(8):
                a.I(f"v_add_f32 v{104+8*c+e}, v{104+8*c+e}, v{104+8*(c+2)+e}")
            for e in range(8):
                a.I(f"v_fmac_f32 v{104+8*c+e}, {sd}, v{64+8*c+e}")
        for e in range(8):
            a.I(f"v_cvt_pk_bf16_f32 v{80+e}, v{104+e}, v{112+e}")
        a.I(f"v_lshrrev_b32 v4, 2, {vLANE}\nv_lshlrev_b32 v4, 16, v4\nv_and_b32 v8, 3, {vLANE}\nv_lshl_add_u32 v4, v8, 4, v4")
        a.I(f"s_lshl_b32 {sT3}, {sT2}, 21\ns_lshl_b32 {sT0}, {sT1}, 15\ns_add_u32 {sT3}, {sT3}, {sT0}")
        a.I(f"s_lshl_b32 {sT0}, {sSLOT}, 6\ns_add_u32 {sT3}, {sT3}, {sT0}\ns_add_u32 {sT0}, {sT3}, {WS_Y}")
        a.I(f"s_add_u32 {sT1}, {sT0}, {16*65536}\ns_add_u32 {sT2}, {sT0}, 16384\ns_add_u32 {sT3}, {sT1}, 16384")

        def wr():
            a.I(f"v_and_b32 v6, 31, {vLANE}\nv_lshlrev_b32 v6, 5, v6\nv_lshl_add_u32 v6, v5, 4, v6\nv_add_u32 v6, {sT5}, v6")
            a.I(f"ds_write_b128 v6, v[80:83]\nds_write_b128 v6, v[84:87] offset:1024")
        self.ctag_store(80, f"s_lshl_b32 {sT5}, {sW}, 11\ns_add_u32 {sT5}, {sT5}, {L_CT}", "v4",
                        [(sT0, 0), (sT1, 0), (sT2, 0), (sT3, 0)], False, vtmp=144, wr_addr=wr)
        a.I("s_barrier")

    def pretouch(self):
        a = self
        a.I(f"s_lshl_b32 {sT0}, {sX}, 4\ns_lshl_b32 {sT1}, {sRH}, 3\ns_add_u32 {sT0}, {sT0}, {sT1}\ns_lshl_b32 {sT1}, {sW}, 1\ns_add_u32 {sT0}, {sT0}, {sT1}")
        a.I(f"s_mul_i32 {sT0}, {sT0}, 57344\ns_add_u32 {sT0}, {sT0}, {WS_H1}")
        a.I(f"s_lshr_b32 {sT1}, {sCC}, 1\ns_mul_i32 {sT1}, {sT1}, 7168\ns_add_u32 {sT0}, {sT0}, {sT1}")
        a.I(f"s_and_b32 {sT2}, {sCC}, 1\ns_mul_i32 {sT2}, {sT2}, 3072")
        a.I(f"v_and_b32 v2, 31, {vLANE}\nv_lshlrev_b32 v3, 7, v2\nv_add_u32 v4, {sT2}, v3")
        a.I(f"v_add_u32 v3, {6144-24*128}, v3\nv_cmp_gt_u32 vcc, 24, v2\nv_cndmask_b32 v3, v3, v4, vcc")
        a.I(f"v_lshrrev_b32 v2, 5, {vLANE}\nv_mul_u32_u24 v2, 57344, v2\nv_add_u32 v3, v3, v2")
        a.I(f"buffer_load_dword v160, v3, {SRD_WS}, {sT0} offen")
        a.I(f"v_bfe_u32 v2, {vLANE}, 1, 4\nv_lshlrev_b32 v2, 11, v2\nv_and_b32 v3, 1, {vLANE}\nv_lshl_add_u32 v2, v3, 7, v2")
        a.I(f"s_lshl_b32 {sT0}, {sX}, 19\ns_lshl_b32 {sT1}, {sRQ}, 17\ns_add_u32 {sT0}, {sT0}, {sT1}\ns_lshl_b32 {sT1}, {sW}, 15\ns_add_u32 {sT0}, {sT0}, {sT1}")
        a.I(f"s_lshl_b32 {sT1}, {sNT}, 8\ns_add_u32 {sT0}, {sT0}, {sT1}\ns_add_u32 {sT0}, {sT0}, {WS_O}")
        a.I(f"buffer_load_dword v161, v2, {SRD_WS}, {sT0} offen")
        a.I(f"v_lshlrev_b32 v2, 8, {vLANE}")
        a.I(f"s_lshl_b32 {sT0}, {sX}, 18\ns_lshr_b32 {sT1}, {sR}, 1\ns_lshl_b32 {sT1}, {sT1}, 14\ns_add_u32 {sT0}, {sT0}, {sT1}")
        a.I(f"s_and_b32 {sT1}, {sR}, 1\ns_lshl_b32 {sT1}, {sT1}, 7\ns_add_u32 {sT0}, {sT0}, {sT1}\ns_add_u32 {sT0}, {sT0}, {WS_Z1}")
        a.I(f"buffer_load_dword v162, v2, {SRD_WS}, {sT0} offen")
        a.I(f"v_lshlrev_b32 v2, 7, {vLANE}\ns_lshl_b32 {sT0}, {sSLOT}, 13\ns_add_u32 {sT0}, {sT0}, {WS_X3}")
        a.I(f"buffer_load_dword v163, v2, {SRD_WS}, {sT0} offen")

    def w2_convert(self, extra):
        a = self
        a.I(f"v_lshrrev_b32 v2, 3, {vLANE}\nv_mul_u32_u24 v2, 160, v2\nv_and_b32 v3, 7, {vLANE}\nv_lshl_add_u32 v2, v3, 4, v2")
        a.I(f"s_mul_i32 {sT0}, {sW}, 10240\ns_add_u32 {sT0}, {sT0}, {L_SCR}\nv_add_u32 v2, {sT0}, v2")
        a.I(f"v_lshrrev_b32 v3, 2, {vLANE}\nv_mul_u32_u24 v3, 160, v3\nv_and_b32 v4, 3, {vLANE}\nv_lshl_add_u32 v3, v4, 3, v3\nv_add_u32 v3, {sT0}, v3")
        for k in range(14):
            buf = (k % 2) * 5120
            for g in range(4):
                d = (k * 4 + g) * 4
                a.I(f"ds_write_b128 v2, a[{d}:{d+3}] offset:{buf + g*1280}")
                if extra and g % 2 == 1: a.I(extra.pop(0))
            for aa in range(4):
                for hh in range(2):
                    ar = (k * 4 + aa) * 4 + 2 * hh
                    a.I(f"ds_read_b64_tr_b16 a[{ar}:{ar+1}], v3 offset:{buf + hh*16*160 + aa*32}")
        for x in extra: a.I(x)
        a.I("s_waitcnt lgkmcnt(0)")

    def allreduce32(self, ra, rb, tmp1, tmp2):
        a = self
        for sh in (8, 4, 2, 1):
            a.I(f"v_add_f32_dpp {ra}, {ra}, {ra} row_ror:{sh} row_mask:0xf bank_mask:0xf")
            a.I(f"v_add_f32_dpp {rb}, {rb}, {rb} row_ror:{sh} row_mask:0xf bank_mask:0xf")
        a.I(f"v_mov_b32 {tmp1}, {ra}\nv_mov_b32 {tmp2}, {rb}")
        a.I(f"v_permlane16_swap_b32 {ra}, {tmp1}\nv_permlane16_swap_b32 {rb}, {tmp2}")
        a.I(f"v_add_f32 {ra}, {ra}, {tmp1}\nv_add_f32 {rb}, {rb}, {tmp2}")

    def stats(self, xb, vs, vq):
        a = self
        a.I(f"v_add_f32 {vs}, v{xb}, v{xb+1}\nv_mul_f32 {vq}, v{xb}, v{xb}\nv_add_f32 v6, v{xb+2}, v{xb+3}\nv_mul_f32 v7, v{xb+2}, v{xb+2}")
        a.I(f"v_fmac_f32 {vq}, v{xb+1}, v{xb+1}\nv_fmac_f32 v7, v{xb+3}, v{xb+3}")
        for e in range(4, 16, 2):
            a.I(f"v_add_f32 {vs}, {vs}, v{xb+e}\nv_fmac_f32 {vq}, v{xb+e}, v{xb+e}\nv_add_f32 v6, v6, v{xb+e+1}\nv_fmac_f32 v7, v{xb+e+1}, v{xb+e+1}")
        a.I(f"v_add_f32 {vs}, {vs}, v6\nv_add_f32 {vq}, {vq}, v7")
        self.allreduce32(vs, vq, "v6", "v7")
        a.I(f"v_mul_f32 {vs}, {f32bits(1/512)}, {vs}\nv_mul_f32 {vq}, {f32bits(1/512)}, {vq}")
        a.I(f"v_fma_f32 {vq}, -{vs}, {vs}, {vq}\nv_max_f32 {vq}, 0, {vq}")

    def r_core(self, x3store):
        a = self
        self.stats(16, "v4", "v5")
        a.I(f"v_add_f32 v5, {sEPS}, v5\nv_rsq_f32 v5, v5")
        for e in range(16):
            a.I(f"v_sub_f32 v{48+e}, v{16+e}, v4")
        for e in range(16):
            a.I(f"v_mul_f32 v{48+e}, v{48+e}, v5")
        for e in range(16):
            a.I(f"v_fmac_f32 v{16+e}, v{48+e}, v{32+e}")
        for j in range(8):
            a.I(f"v_cvt_pk_bf16_f32 v{48+j}, v{16+2*j}, v{16+2*j+1}")
        for j in range(8):
            a.I(f"v_lshlrev_b32 v{16+2*j}, 16, v{48+j}\nv_and_b32 v{16+2*j+1}, {sMASKHI}, v{48+j}")
        if x3store:
            a.I(f"v_lshrrev_b32 v8, 5, {vTID}\nv_lshlrev_b32 v8, 10, v8\nv_bfe_u32 v9, {vTID}, 2, 3\nv_lshl_add_u32 v8, v9, 7, v8\nv_and_b32 v9, 3, {vTID}\nv_lshl_add_u32 v8, v9, 4, v8")
            a.I(f"s_lshl_b32 {sT0}, {sSLOT}, 13\ns_add_u32 {sT0}, {sT0}, {WS_X3}")
            self.hstore([f"buffer_store_dwordx4 v[48:51], v8, {SRD_WS}, {sT0} offen",
                         f"buffer_store_dwordx4 v[52:55], v8, {SRD_WS}, {sT0} offen offset:64"])
        else:
            for j in range(8):
                a.I(f"v_accvgpr_write_b32 a{224+j}, v{48+j}")
        self.stats(16, "v4", "v5")
        a.I(f"v_add_f32 v6, {sEPS}, v5\nv_rsq_f32 v7, v6\nv_rcp_f32 v6, v6")
        a.I(f"v_mul_f32 v6, v5, v6\nv_add_f32 v6, {sEPS}, v6\nv_rsq_f32 v6, v6\nv_mul_f32 v5, v7, v6")
        for e in range(16):
            a.I(f"v_sub_f32 v{16+e}, v{16+e}, v4")
        for e in range(16):
            a.I(f"v_mul_f32 v{16+e}, v{16+e}, v5")
        for j in range(8):
            a.I(f"v_cvt_pk_bf16_f32 v{56+j}, v{16+2*j}, v{16+2*j+1}")
        a.I(f"v_bfe_u32 v8, {vTID}, 2, 3\nv_lshlrev_b32 v8, 11, v8\nv_and_b32 v9, 3, {vTID}\nv_lshl_add_u32 v8, v9, 8, v8")
        a.I(f"v_lshrrev_b32 v9, 5, {vTID}\nv_lshl_add_u32 v8, v9, 4, v8")
        a.I(f"s_lshl_b32 {sT0}, {sX}, 18\ns_lshr_b32 {sT1}, {sR}, 1\ns_lshl_b32 {sT1}, {sT1}, 14\ns_add_u32 {sT0}, {sT0}, {sT1}")
        a.I(f"s_and_b32 {sT1}, {sR}, 1\ns_lshl_b32 {sT1}, {sT1}, 7\ns_add_u32 {sT0}, {sT0}, {sT1}\ns_add_u32 {sT0}, {sT0}, {sZB}")
        self.hstore([f"buffer_store_dwordx4 v[56:59], v8, {SRD_WS}, {sT0} offen",
                     f"buffer_store_dwordx4 v[60:63], v8, {SRD_WS}, {sT0} offen offset:1024"])

    def r1(self):
        a = self
        a.I(f"v_lshlrev_b32 v2, 4, {vLANE}\ns_lshl_b32 {sT0}, {sSLOT}, 14\ns_add_u32 {sT0}, {sT0}, {WS_Y}\ns_lshl_b32 {sT1}, {sW}, 12\ns_add_u32 {sT0}, {sT0}, {sT1}")
        a.I(f"v_and_b32 v3, 3, {vLANE}\nv_lshlrev_b32 v3, 11, v3\nv_lshrrev_b32 v4, 2, {vTID}\nv_bfe_u32 v4, {vLANE}, 2, 4\nv_lshl_add_u32 v3, v4, 2, v3")
        a.I(f"s_lshl_b32 {sT1}, {sW}, 8\ns_add_u32 {sT1}, {sT1}, {L_YT}\nv_add_u32 v3, {sT1}, v3")
        for j in range(8):
            a.I(f"v_accvgpr_read_b32 v{48+j}, a{224+j}")
        for j in range(8):
            a.I(f"v_lshlrev_b32 v{16+2*j}, 16, v{48+j}\nv_and_b32 v{16+2*j+1}, {sMASKHI}, v{48+j}")
        self.tagpoll("v2", sT0, (0, 1024, 2048, 3072), 64, sleep=4)
        a.stamp("y arrived")
        for j in range(4):
            a.I(f"v_add_u32 v4, {64*j}, v3")
            a.I(f"ds_write2st64_b32 v4, v{64+4*j}, v{65+4*j} offset0:0 offset1:4")
        self.rowaddr("v4", "v5")
        a.I(f"v_add_u32 v4, {L_YT}, v4")
        a.I("s_waitcnt lgkmcnt(0)\ns_barrier")
        for i, off in enumerate((0, 32, 64, 96)):
            a.I(f"ds_read_b64 v[{8+2*i}:{9+2*i}], v4 offset:{off}")
        a.I("s_waitcnt lgkmcnt(0)")
        for j in range(8):
            a.I(f"v_lshlrev_b32 v{32+2*j}, 16, v{8+j}\nv_and_b32 v{32+2*j+1}, {sMASKHI}, v{8+j}")
            a.I(f"v_accvgpr_write_b32 a{232+j}, v{8+j}")
        self.r_core(False)

    def r2(self):
        a = self
        a.I(f"v_lshlrev_b32 v8, 4, {vLANE}")
        a.I(f"s_lshl_b32 {sT0}, {sSLOT}, 14\ns_add_u32 {sT0}, {sT0}, {WS_O}\ns_lshl_b32 {sT1}, {sW}, 12\ns_add_u32 {sT0}, {sT0}, {sT1}")
        for j in range(8):
            a.I(f"v_accvgpr_read_b32 v{48+j}, a{224+j}\nv_accvgpr_read_b32 v{56+j}, a{232+j}")
        for j in range(8):
            a.I(f"v_lshlrev_b32 v{16+2*j}, 16, v{48+j}\nv_and_b32 v{16+2*j+1}, {sMASKHI}, v{48+j}")
            a.I(f"v_lshlrev_b32 v{32+2*j}, 16, v{56+j}\nv_and_b32 v{32+2*j+1}, {sMASKHI}, v{56+j}")
        a.I(f"s_lshl_b32 {sT5}, {sW}, 11\ns_add_u32 {sT5}, {sT5}, {L_CT}")
        a.I(f"v_lshlrev_b32 v6, 3, {vLANE}\nv_add_u32 v6, {sT5}, v6\nv_lshlrev_b32 v7, 5, {vLANE}\nv_add_u32 v7, {sT5}, v7")
        self.tagpoll("v8", sT0, (0, 1024, 2048, 3072), 64, sleep=1)
        a.stamp("o arrived")
        for j in range(4):
            a.I(f"ds_write_b64 v6, v[{64+4*j}:{65+4*j}] offset:{512*j}")
        a.I("ds_read_b128 v[64:67], v7\nds_read_b128 v[68:71], v7 offset:16\ns_waitcnt lgkmcnt(0)")
        for j in range(8):
            a.I(f"v_lshlrev_b32 v{48+2*j}, 16, v{64+j}\nv_and_b32 v{48+2*j+1}, {sMASKHI}, v{64+j}")
        for e in range(16):
            a.I(f"v_add_f32 v{16+e}, v{16+e}, v{48+e}")
        for j in range(8):
            a.I(f"v_cvt_pk_bf16_f32 v{48+j}, v{16+2*j}, v{16+2*j+1}")
        for j in range(8):
            a.I(f"v_lshlrev_b32 v{16+2*j}, 16, v{48+j}\nv_and_b32 v{16+2*j+1}, {sMASKHI}, v{48+j}")
        self.r_core(True)

    def gemm1_pre(self):
        a = self
        a.I(f"v_lshrrev_b32 v2, 4, {vLANE}\nv_lshlrev_b32 v2, 3, v2\ns_mul_i32 {sT0}, {sCC}, 224")
        for aa in range(7):
            a.I(f"buffer_load_dwordx2 v[{64+2*aa}:{65+2*aa}], v2, {SRD_B1}, {sT0} offen offset:{32*aa}")
        a.I("s_waitcnt vmcnt(0)")
        for aa in range(7):
            for rt in range(2):
                d = 8 + (aa * 2 + rt) * 4
                for h in range(2):
                    s = 64 + 2 * aa + h
                    a.I(f"v_lshlrev_b32 v{d+2*h}, 16, v{s}\nv_and_b32 v{d+2*h+1}, {sMASKHI}, v{s}")

    def gemm1(self):
        a = self
        ZB = 120
        a.I(f"v_lshlrev_b32 v2, 4, {vLANE}")
        a.I(f"s_lshl_b32 {sT0}, {sX}, 18\ns_lshl_b32 {sT1}, {sRH}, 17\ns_add_u32 {sT0}, {sT0}, {sT1}")
        a.I(f"s_lshl_b32 {sT1}, {sW}, 15\ns_add_u32 {sT0}, {sT0}, {sT1}\ns_add_u32 {sT0}, {sT0}, {sZB}")
        a.I(f"s_add_u32 {sT1}, {sT0}, 16384")
        PD = self.o.get("g1_pd", 4)

        def zload(t):
            out = []
            for rt in range(2):
                d = ZB + (t * 2 + rt) * 4
                so = sT0 if rt == 0 else sT1
                x = f"buffer_load_dwordx4 v[{d}:{d+3}], v2, {SRD_WS}, {so} offen offset:{(t%4)*1024} sc1"
                if rt == 1 and t % 4 == 3:
                    x += f"\ns_add_u32 {sT0}, {sT0}, 4096\ns_add_u32 {sT1}, {sT1}, 4096"
                out.append(x)
            return out
        for t in range(PD):
            for x in zload(t): a.I(x)
        WB = 64
        a.I(f"v_lshrrev_b32 v3, 2, {vLANE}\nv_mul_u32_u24 v3, 224, v3\nv_and_b32 v4, 3, {vLANE}\nv_lshl_add_u32 v3, v4, 3, v3\nv_add_u32 v4, 57344, v3")

        def wread(t, aa, hh):
            b = WB + 28 * (t % 2)
            base, tt = ("v3", t) if t < 8 else ("v4", t - 8)
            off = L_W1 + (32 * tt + 16 * hh) * 224 + 32 * aa
            return f"ds_read_b64_tr_b16 v[{b+4*aa+2*hh}:{b+4*aa+2*hh+1}], {base} offset:{off}"
        for aa in range(7):
            for hh in range(2): a.I(wread(0, aa, hh))
        for t in range(16):
            b = WB + 28 * (t % 2)
            for aa in range(7):
                lg = 12 if t + 1 < 16 else (7 - aa) * 2 - 2
                if aa == 0:
                    a.I(f"s_waitcnt vmcnt({2*min(PD-1, 15-t)}) lgkmcnt({lg})")
                else:
                    a.I(f"s_waitcnt lgkmcnt({lg})")
                for rt in range(2):
                    d = 8 + (aa * 2 + rt) * 4
                    z = ZB + (t * 2 + rt) * 4
                    a.I(f"v_mfma_f32_16x16x32_bf16 v[{d}:{d+3}], v[{b+4*aa}:{b+4*aa+3}], v[{z}:{z+3}], v[{d}:{d+3}]")
                    if t + 1 < 16:
                        a.I(wread(t + 1, aa, rt))
                    if aa == 1 and t + PD < 16:
                        a.I(zload(t + PD)[rt])
        self.stamp("g1 mfma done")
        c1 = -2.0 * 0.7978845608028654 * 1.4426950408889634
        c2 = c1 * 0.044715
        a.I(f"v_mov_b32 v64, {f32bits(c2)}")
        a.I(f"s_lshl_b32 {sT0}, {sX}, 4\ns_lshl_b32 {sT1}, {sRH}, 3\ns_add_u32 {sT0}, {sT0}, {sT1}\ns_lshl_b32 {sT1}, {sW}, 1\ns_add_u32 {sT0}, {sT0}, {sT1}")
        a.I(f"s_mul_i32 {sT0}, {sT0}, 57344\ns_add_u32 {sT0}, {sT0}, {sHB}")
        a.I(f"s_lshr_b32 {sT1}, {sCC}, 1\ns_mul_i32 {sT1}, {sT1}, 7168\ns_add_u32 {sT0}, {sT0}, {sT1}")
        a.I(f"s_and_b32 {sT2}, {sCC}, 1\ns_mul_i32 {sT1}, {sT2}, 3072\ns_add_u32 {sT1}, {sT0}, {sT1}")
        a.I(f"s_lshl_b32 {sT2}, {sT2}, 3\ns_add_u32 {sT2}, {sT0}, {sT2}\ns_add_u32 {sT2}, {sT2}, 6144")
        a.I(f"s_add_u32 {sT3}, {sT1}, 57344\ns_add_u32 {sT4}, {sT2}, 57344")
        for aa in range(7):
            for rt in range(2):
                d = 8 + (aa * 2 + rt) * 4
                t0 = 68 + 4 * ((aa * 2 + rt) % 2)
                for j in range(4): a.I(f"v_mul_f32 v{t0+j}, v{d+j}, v{d+j}")
                for j in range(4): a.I(f"v_fmaak_f32 v{t0+j}, v64, v{t0+j}, {f32bits(c1)}")
                for j in range(4): a.I(f"v_mul_f32 v{t0+j}, v{t0+j}, v{d+j}")
                for j in range(4): a.I(f"v_exp_f32 v{t0+j}, v{t0+j}")
                for j in range(4): a.I(f"v_add_f32 v{t0+j}, 1.0, v{t0+j}")
                for j in range(4): a.I(f"v_rcp_f32 v{t0+j}, v{t0+j}")
                for j in range(4): a.I(f"v_mul_f32 v{d+j}, v{d+j}, v{t0+j}")
        st = []
        for rt in range(2):
            so1 = sT1 if rt == 0 else sT3
            so2 = sT2 if rt == 0 else sT4
            for i in range(3):
                p = 80 + (rt * 3 + i) * 4
                for h in range(2):
                    d = 8 + ((2 * i + h) * 2 + rt) * 4
                    a.I(f"v_cvt_pk_bf16_f32 v{p+2*h}, v{d}, v{d+1}\nv_cvt_pk_bf16_f32 v{p+2*h+1}, v{d+2}, v{d+3}")
                st.append(f"buffer_store_dwordx4 v[{p}:{p+3}], v2, {SRD_WS}, {so1} offen offset:{i*1024}")
            d = 8 + (6 * 2 + rt) * 4
            p = 104 + 2 * rt
            a.I(f"v_cvt_pk_bf16_f32 v{p}, v{d}, v{d+1}\nv_cvt_pk_bf16_f32 v{p+1}, v{d+2}, v{d+3}")
            st.append(f"buffer_store_dwordx2 v[{p}:{p+1}], v2, {SRD_WS}, {so2} offen")
        self.hstore(st)

    def gemm2(self, final):
        a = self
        a.I(f"v_lshlrev_b32 v2, 4, {vLANE}")
        a.I(f"s_lshl_b32 {sT0}, {sX}, 4\ns_lshl_b32 {sT1}, {sRQ}, 2\ns_add_u32 {sT0}, {sT0}, {sT1}\ns_mul_i32 {sT0}, {sT0}, 57344")
        a.I(f"s_mul_i32 {sT1}, {sW}, 14336\ns_add_u32 {sT0}, {sT0}, {sT1}\ns_add_u32 {sT0}, {sT0}, {sHB}")

        if final:
            a.I(f"v_and_b32 v4, 15, {vLANE}\nv_lshlrev_b32 v4, 10, v4\nv_lshrrev_b32 v5, 4, {vLANE}\nv_lshl_add_u32 v4, v5, 4, v4")
            a.I(f"s_lshl_b32 {sT2}, {sX}, 18\ns_lshl_b32 {sT3}, {sRQ}, 16\ns_add_u32 {sT2}, {sT2}, {sT3}\ns_lshl_b32 {sT3}, {sW}, 14\ns_add_u32 {sT2}, {sT2}, {sT3}")
            a.I(f"s_lshl_b32 {sT3}, {sNT}, 7\ns_add_u32 {sT2}, {sT2}, {sT3}\ns_add_u32 {sT2}, {sT2}, {WS_X3}")
        PD = self.o.get("g2_pd", 14)
        for idx in range(4):
            a.I(f"s_add_u32 {sT1}, {sW}, {1+idx}\ns_and_b32 {sT1}, {sT1}, 3\ns_mul_i32 {sT1}, {sT1}, 57344\ns_add_u32 s{76+idx}, {sT1}, {sT0}")

        def hload(n):
            idx, k = divmod(n, 14)
            b = 40 + 4 * (n % 42)
            x = ""
            if k % 4 == 0 and k > 0:
                x = f"s_add_u32 s{76+idx}, s{76+idx}, 4096\n"
            return x + f"buffer_load_dwordx4 v[{b}:{b+3}], v2, {SRD_WS}, s{76+idx} offen offset:{(k%4)*1024} sc1"
        for n in range(PD): a.I(hload(n))
        if final:
            a.I(f"buffer_load_dwordx4 v[208:211], v4, {SRD_WS}, {sT2} offen sc1")
            a.I(f"buffer_load_dwordx4 v[212:215], v4, {SRD_WS}, {sT2} offen offset:64 sc1")
        a.I(f"v_lshrrev_b32 v5, 4, {vLANE}\nv_lshlrev_b32 v5, 3, v5\ns_lshl_b32 {sT2}, {sNT}, 7")
        for aa in range(4):
            a.I(f"buffer_load_dwordx2 v[{216+2*aa}:{217+2*aa}], v5, {SRD_B2}, {sT2} offen offset:{32*aa}")
        extra = 6 if final else 4
        if not final:
            self.tags_into((224, 228, 232, 236))
        a.I(f"v_lshlrev_b32 v3, 4, {vLANE}")
        issued = PD
        for idx in range(4):
            acc = 8 + 16 * (idx % 2)
            for k in range(14):
                n = idx * 14 + k
                b = 40 + 4 * (n % 42)
                younger = (issued - 1 - n) + (extra if n < PD else 0)
                a.I(f"s_waitcnt vmcnt({younger})")
                for aa in range(4):
                    ar = (k * 4 + aa) * 4
                    d = acc + 4 * aa
                    c = "0" if k == 0 else f"v[{d}:{d+3}]"
                    a.I(f"v_mfma_f32_16x16x32_bf16 v[{d}:{d+3}], a[{ar}:{ar+3}], v[{b}:{b+3}], {c}")
                    if aa == 1 and issued < 56:
                        a.I(hload(issued)); issued += 1
            if idx < 3:
                a.I(f"s_add_u32 {sT1}, {sW}, {1+idx}\ns_and_b32 {sT1}, {sT1}, 3\ns_mul_i32 {sT1}, {sT1}, 12288\ns_add_u32 {sT1}, {sT1}, {L_SCR + (2-idx)*4096}")
                a.I(f"v_add_u32 v4, {sT1}, v3")
                for aa in range(4):
                    a.I(f"ds_write_b128 v4, v[{acc+4*aa}:{acc+4*aa+3}] offset:{aa*1024}")
        self.stamp("g2 mfma done")
        a.I("s_waitcnt lgkmcnt(0)\ns_barrier")
        a.I(f"s_mul_i32 {sT1}, {sW}, 12288\ns_add_u32 {sT1}, {sT1}, {L_SCR}\nv_add_u32 v4, {sT1}, v3")
        for s in range(3):
            for aa in range(4):
                d = 40 + s * 16 + aa * 4
                a.I(f"ds_read_b128 v[{d}:{d+3}], v4 offset:{s*4096 + aa*1024}")
        for aa in range(4):
            for h in range(2):
                s = 216 + 2 * aa + h
                a.I(f"v_lshlrev_b32 v{88+4*aa+2*h}, 16, v{s}\nv_and_b32 v{88+4*aa+2*h+1}, {sMASKHI}, v{s}")
        for e in range(16):
            a.I(f"v_add_f32 v{24+e}, v{24+e}, v{88+e}")
        a.I("s_waitcnt lgkmcnt(0)")
        for e in range(16):
            a.I(f"v_add_f32 v{24+e}, v{24+e}, v{40+e}\nv_add_f32 v{56+e}, v{56+e}, v{72+e}")
        for e in range(16):
            a.I(f"v_add_f32 v{24+e}, v{24+e}, v{56+e}")
        if not final:
            for j in range(8):
                a.I(f"v_cvt_pk_bf16_f32 v{40+j}, v{24+2*j}, v{24+2*j+1}")
            a.I("s_barrier")
            a.I(f"v_lshrrev_b32 v4, 4, {vLANE}\nv_lshlrev_b32 v4, 11, v4\nv_and_b32 v5, 15, {vLANE}\nv_lshl_add_u32 v4, v5, 4, v4")
            a.I(f"s_lshl_b32 {sT2}, {sX}, 19\ns_lshl_b32 {sT3}, {sRQ}, 17\ns_add_u32 {sT2}, {sT2}, {sT3}\ns_lshl_b32 {sT3}, {sW}, 15\ns_add_u32 {sT2}, {sT2}, {sT3}")
            a.I(f"s_lshl_b32 {sT3}, {sNT}, 8\ns_add_u32 {sT2}, {sT2}, {sT3}\ns_add_u32 {sT2}, {sT2}, {WS_O}")
            a.I(f"s_add_u32 {sT3}, {sT2}, 8192\ns_add_u32 {sT4}, {sT2}, 16384\ns_add_u32 {sT1}, {sT2}, 24576")
            a.I(f"s_lshl_b32 {sT5}, {sW}, 11\ns_add_u32 {sT5}, {sT5}, {L_CT}")
            a.I(f"v_lshlrev_b32 v6, 5, {vLANE}\nv_add_u32 v6, {sT5}, v6")
            a.I("ds_write_b128 v6, v[40:43]\nds_write_b128 v6, v[44:47] offset:16")
            a.I(f"v_bfe_u32 v7, {vLANE}, 2, 2\nv_lshlrev_b32 v7, 9, v7\nv_lshrrev_b32 v6, 4, {vLANE}\nv_lshl_add_u32 v7, v6, 5, v7\nv_and_b32 v6, 3, {vLANE}\nv_lshl_add_u32 v7, v6, 3, v7\nv_add_u32 v7, {sT5}, v7")
            for j in range(4):
                a.I(f"ds_read_b64 v[{224+4*j}:{225+4*j}], v7 offset:{128*j}")
            a.I("s_waitcnt lgkmcnt(0)")
            self.hstore([f"buffer_store_dwordx4 v[{224+4*j}:{227+4*j}], v4, {SRD_WS}, {(sT2, sT3, sT4, sT1)[j]} offen" for j in range(4)])
        else:
            for j in range(8):
                a.I(f"v_cvt_pk_bf16_f32 v{40+j}, v{24+2*j}, v{24+2*j+1}")
            for j in range(8):
                a.I(f"v_lshlrev_b32 v{24+2*j}, 16, v{40+j}\nv_and_b32 v{24+2*j+1}, {sMASKHI}, v{40+j}")
                a.I(f"v_lshlrev_b32 v{56+2*j}, 16, v{208+j}\nv_and_b32 v{56+2*j+1}, {sMASKHI}, v{208+j}")
            for e in range(16):
                a.I(f"v_add_f32 v{24+e}, v{24+e}, v{56+e}")
            for j in range(8):
                a.I(f"v_cvt_pk_bf16_f32 v{40+j}, v{24+2*j}, v{24+2*j+1}")
            a.I(f"v_and_b32 v4, 15, {vLANE}\nv_lshlrev_b32 v4, 10, v4\nv_lshrrev_b32 v5, 4, {vLANE}\nv_lshl_add_u32 v4, v5, 3, v4")
            a.I(f"s_lshl_b32 {sT2}, {sX}, 18\ns_lshl_b32 {sT3}, {sRQ}, 16\ns_add_u32 {sT2}, {sT2}, {sT3}\ns_lshl_b32 {sT3}, {sW}, 14\ns_add_u32 {sT2}, {sT2}, {sT3}")
            a.I(f"s_lshl_b32 {sT3}, {sNT}, 7\ns_add_u32 {sT2}, {sT2}, {sT3}")
            for aa in range(4):
                a.I(f"buffer_store_dwordx2 v[{40+2*aa}:{41+2*aa}], v4, {SRD_OUT}, {sT2} offen offset:{32*aa}")

    def build(self):
        a = self
        self.stamps = []
        a.prologue()
        a.other_loads()
        a.I("s_waitcnt lgkmcnt(0)")
        a.I(f"s_and_b32 {sT}, {sT}, 0xfffffff0\ns_add_u32 {sT}, {sT}, 0x9e3779b0")
        a.I(f"s_mul_i32 {sTH}, {sT}, 0x85ebca6b\ns_add_u32 {sTH}, {sTH}, 0xc2b2ae35")
        a.I(f"s_lshl_b32 {sT0}, {sSLOT}, 2\ns_add_u32 {sT0}, {sT0}, {WS_FLAGS + HOP_REG * 0x400}")
        a.I(f"s_or_b32 {sT1}, {sT}, {sXCC}\nv_mov_b32 v6, {sT1}\ns_mov_b64 exec, 1")
        a.I(f"buffer_store_dword v6, off, {SRD_WS}, {sT0} sc1\ns_mov_b64 exec, -1")
        a.p0_compute(9 + getattr(self, 'ntlb', 0))
        a.stamp("p0 computed")
        a.I(f"s_waitcnt vmcnt({9 + getattr(self, 'ntlb', 0)})")
        a.toeplitz_build()
        a.stamp("toeplitz")
        if self.o.get("drain_a"):
            a.I("s_waitcnt vmcnt(0)")
            a.stamp("p0 drained")
        a.maybe_stop(1)
        a.hop_a()
        a.stamp("u loaded")
        a.conv_main()
        a.stamp("conv main")
        a.conv_epilogue()
        a.stamp("y stored")
        a.maybe_stop(2)
        a.pretouch()
        a.w1_dma_setup()
        a.I("s_waitcnt vmcnt(8)")
        a.w2_convert(a.w1_dma_list())
        a.stamp("w2 conv")
        a.I(f"s_lshl_b32 {sT5}, {sX}, 5")
        a.poll(HOP_REG, sT5, 32, purity=True)
        a.I(f"s_mov_b32 {sZB}, {WS_Z1}\ns_mov_b32 {sHB}, {WS_H1}")
        a.I("s_barrier")
        a.r1()
        skip = a.lab("ep")
        a.I(f"s_or_b32 {sT0}, {sSLOT}, {sW}\ns_cmp_lg_u32 {sT0}, 0\ns_cbranch_scc1 {skip}")
        a.I(f"v_mov_b32 v2, {sT}\ns_mov_b64 exec, 1\nbuffer_store_dword v2, off, {SRD_WS}, 0 sc1\ns_mov_b64 exec, -1")
        a.a.L(skip)
        a.signal(HOP_C1)
        a.stamp("r1 done")
        a.maybe_stop(3)
        for layer in range(2):
            hopc = HOP_C1 if layer == 0 else HOP_C2
            hopd = HOP_D1 if layer == 0 else HOP_D2
            a.gemm1_pre()
            a.I(f"s_lshl_b32 {sT5}, {sX}, 5\ns_lshl_b32 {sT4}, {sRH}, 4\ns_add_u32 {sT5}, {sT5}, {sT4}")
            a.poll(hopc, sT5, 16)
            a.stamp("c polled")
            a.gemm1()
            a.signal(hopd)
            a.stamp("g1 done")
            a.maybe_stop(4 + 3 * layer)
            a.I(f"s_lshl_b32 {sT5}, {sX}, 5\ns_lshl_b32 {sT4}, {sRH}, 4\ns_add_u32 {sT5}, {sT5}, {sT4}")
            a.poll(hopd, sT5, 16)
            a.stamp("d polled")
            a.gemm2(layer == 1)
            if layer == 0:
                a.stamp("g2 done")
                a.maybe_stop(5)
                a.I(f"s_mov_b32 {sZB}, {WS_Z3}\ns_mov_b32 {sHB}, {WS_H3}\ns_cmp_eq_u32 {sPURE}, 1\ns_cmov_b32 {sZB}, {WS_Z1}\ns_cmov_b32 {sHB}, {WS_H1}")
                a.r2()
                a.signal(HOP_C2)
                a.stamp("r2 done")
                a.maybe_stop(6)
        a.a.L("L_end")
        if self.prof:
            a.I("s_waitcnt vmcnt(0)")
            a.stamp("end")
            skip = a.lab("pf")
            a.I(f"s_cmp_lg_u32 {sW}, 0\ns_cbranch_scc1 {skip}")
            a.I(f"v_writelane_b32 v255, {sPURE}, 62")
            a.I(f"v_lshlrev_b32 v2, 2, {vLANE}\ns_lshl_b32 {sT0}, {sSLOT}, 8\ns_add_u32 {sT0}, {sT0}, {WS_PROF}")
            a.I(f"buffer_store_dword v255, v2, {SRD_WS}, {sT0} offen")
            a.a.L(skip)
        a.a.L("L_exit")
        a.I("s_endpgm")
        body = a.a.finish()
        hdr = f"""; Fused persistent kernel: conv (MFMA Toeplitz) + 2x (LN, LN, MLP) with in-launch hand-offs
; @launch grid=(256,1,1) block=(256,1,1) lds={LDS_BYTES}
.amdgcn_target "amdgcn-amd-amdhsa--gfx950"
.text
.globl {NAME}
.p2align 8
.type {NAME},@function
{NAME}:
"""
        ftr = f""".section .rodata,"a"
.p2align 6
.amdhsa_kernel {NAME}
  .amdhsa_next_free_vgpr 512
  .amdhsa_next_free_sgpr 102
  .amdhsa_accum_offset 256
  .amdhsa_group_segment_fixed_size 0
  .amdhsa_kernarg_size 112
  .amdhsa_user_sgpr_count 2
  .amdhsa_user_sgpr_kernarg_segment_ptr 1
  .amdhsa_system_sgpr_workgroup_id_x 1
.end_amdhsa_kernel
"""
        return hdr + body + ftr


if __name__ == "__main__":
    import argparse
    ap = argparse.ArgumentParser()
    ap.add_argument("--stop", type=int, default=99)
    ap.add_argument("--prof", action="store_true")
    ap.add_argument("--slow", action="store_true")
    ap.add_argument("--opt", action="append", default=[])
    ap.add_argument("-o", default="k.s")
    args = ap.parse_args()
    opts = {}
    for o in args.opt:
        k, v = o.split("="); opts[k] = int(v)
    g = Gen(stop=args.stop, prof=args.prof, force_slow=args.slow, opts=opts)
    txt = g.build()
    open(args.o, "w").write(txt)
    print("lines", txt.count("\n"), "nop insertions", g.a.n_nops)
    if args.prof: open(args.o + ".stamps", "w").write(",".join(g.stamps))
```

```python
import sys, struct
from asmlib import Asm

NAME = "interleave_layers__ssm_conv_h3__mixer_channel_mlp__prompt_kernel"

WS_FLAGS = 0x1000
WS_PROF = 0x8000
WS_KVT = 0x200000
WS_Y = 0x600000
WS_O = 0xA00000
WS_Z1 = 0xE00000
WS_Z3 = 0x1000000
WS_X3 = 0x1200000
WS_H1 = 0x1400000
WS_H3 = 0x1C00000
WS_SIZE = 0x2400000
HOP_REG, HOP_C1, HOP_D1, HOP_C2, HOP_D2 = range(5)

L_W1 = 0
L_CR = 114688
CS = 4160
L_TOEP = L_CR
L_UPL = L_CR + 2 * 4 * CS
PS = 1536
L_DUMMY = L_UPL + 2 * 4 * PS
L_XCH = L_CR
L_SCR = L_CR
L_YT = L_CR + 40960
L_P0T = 0
L_CT = L_CR + 32768
LDS_BYTES = 163840

sX, sR, sW = "s4", "s5", "s6"
SRD_Q, SRD_K, SRD_V, SRD_H = "s[8:11]", "s[12:15]", "s[16:19]", "s[20:23]"
SRD_W1, SRD_W2, SRD_WS, SRD_OUT = "s[24:27]", "s[28:31]", "s[32:35]", "s[36:39]"
SRD_SK, SRD_B1, SRD_B2 = "s[40:43]", "s[44:47]", "s[48:51]"
sSLOT = "s52"
sD0 = "s53"
sZB = "s54"
sC4096 = "s55"
sSPIN = "s56"
sT0, sT1, sT2, sT3, sT4, sT5 = "s57", "s58", "s59", "s60", "s61", "s62"
sMASKLO = "s63"
sM0, sM1, sM2, sM3 = "s[64:65]", "s[66:67]", "s[68:69]", "s[70:71]"
sHB = "s72"
sMASKHI = "s92"
sRH, sCC, sRQ, sNT = "s93", "s94", "s95", "s96"
sEPS = "s97"
sT, sTH, sTAG = "s98", "s99", "s[98:99]"
sPURE = "s100"
sXCC = "s101"

vTID, vLANE = "v0", "v1"


def f32bits(x):
    return "0x%08x" % struct.unpack("<I", struct.pack("<f", x))[0]


class Gen:
    def __init__(self, stop=99, prof=False, force_slow=False, opts=None):
        self.a = Asm()
        self.stop = stop
        self.prof = prof
        self.nlabel = 0
        self.nstamp = 0
        self.force_slow = force_slow
        self.o = opts or {}

    def lab(self, base):
        self.nlabel += 1
        return f"L_{base}_{self.nlabel}"

    def I(self, s): self.a.I(s)
    def C(self, s): self.a.C(s)

    def stamp(self, name):
        if not self.prof: return
        i = self.nstamp; self.nstamp += 1
        self.C(f"stamp {i}: {name}")
        self.I(f"s_memtime s[0:1]\ns_waitcnt lgkmcnt(0)\nv_writelane_b32 v255, s0, {i}")
        self.stamps.append(name)

    def hstore(self, instrs, local=True):
        a = self
        if not local:
            for i in instrs: a.I(i + " sc1")
            return
        lp = a.lab("stp"); ld = a.lab("std")
        a.I(f"s_cmp_eq_u32 {sPURE}, 1\ns_cbranch_scc1 {lp}")
        for i in instrs: a.I(i + " sc1")
        a.I(f"s_branch {ld}")
        a.a.L(lp)
        for i in instrs: a.I(i)
        a.a.L(ld)

    def signal(self, hop):
        a = self
        skip = a.lab("sig")
        a.I("s_waitcnt vmcnt(0) lgkmcnt(0)\ns_barrier")
        a.I(f"s_cmp_lg_u32 {sW}, 0\ns_cbranch_scc1 {skip}")
        a.I(f"s_lshl_b32 {sT0}, {sSLOT}, 2\ns_add_u32 {sT0}, {sT0}, {WS_FLAGS + hop * 0x400}")
        a.I(f"v_mov_b32 v2, {sT}")
        a.I("s_mov_b64 exec, 1")
        self.hstore([f"buffer_store_dword v2, off, {SRD_WS}, {sT0}"])
        a.I("s_mov_b64 exec, -1")
        a.a.L(skip)

    def poll(self, hop, first_slot_sgpr, n, purity=False):
        a = self
        loop = a.lab("poll"); done = a.lab("polld")
        a.I(f"s_lshl_b32 {sT0}, {first_slot_sgpr}, 2\ns_add_u32 {sT0}, {sT0}, {WS_FLAGS + hop * 0x400}")
        a.I(f"v_min_u32 v2, {n - 1}, {vLANE}\nv_lshlrev_b32 v2, 2, v2")
        a.I(f"s_mov_b32 {sSPIN}, 0x40000")
        a.a.L(loop)
        a.I(f"buffer_load_dword v3, v2, {SRD_WS}, {sT0} offen sc1")
        a.I("s_waitcnt vmcnt(0)")
        if purity:
            a.I(f"v_and_b32 v4, -16, v3\nv_cmp_ne_u32 vcc, {sT}, v4")
        else:
            a.I(f"v_cmp_ne_u32 vcc, {sT}, v3")
        a.I(f"s_cbranch_vccz {done}")
        a.I(f"s_sub_u32 {sSPIN}, {sSPIN}, 1\ns_cbranch_scc1 {done}")
        a.I("s_sleep 1")
        a.I(f"s_branch {loop}")
        a.a.L(done)
        if purity:
            a.I(f"v_and_b32 v4, 15, v3\nv_cmp_ne_u32 vcc, {sXCC}, v4")
            a.I(f"s_cmp_eq_u64 vcc, 0\ns_cselect_b32 {sPURE}, 1, 0")
            if self.force_slow:
                a.I(f"s_mov_b32 {sPURE}, 0")

    def tagpoll(self, vaddr, soff, offs, dst, sleep=2):
        a = self
        loop = a.lab("tp"); done = a.lab("tpd")
        a.I(f"s_mov_b32 {sSPIN}, 0x20000")
        a.a.L(loop)
        for j in range(4):
            a.I(f"buffer_load_dwordx4 v[{dst+4*j}:{dst+4*j+3}], {vaddr}, {SRD_WS}, {soff} offen offset:{offs[j]} sc1")
        a.I("s_waitcnt vmcnt(0)")
        ms = (sM0, sM1, sM2, sM3)
        for j in range(4):
            a.I(f"v_cmp_ne_u64 {ms[j]}, {sTAG}, v[{dst+4*j+2}:{dst+4*j+3}]")
        a.I(f"s_or_b64 {sM0}, {sM0}, {sM1}\ns_or_b64 {sM2}, {sM2}, {sM3}\ns_or_b64 {sM0}, {sM0}, {sM2}")
        a.I(f"s_cbranch_scc0 {done}")
        a.I(f"s_sub_u32 {sSPIN}, {sSPIN}, 1\ns_cbranch_scc1 {done}")
        a.I(f"s_sleep {sleep}")
        a.I(f"s_branch {loop}")
        a.a.L(done)


    def ctag_store(self, src, lds_base_sgpr_setup, vaddr, soffs, local, vtmp=8, wr_addr=None, plain=False):
        a = self
        a.I(lds_base_sgpr_setup)
        if wr_addr is None:
            a.I(f"v_lshlrev_b32 v6, 5, {vLANE}\nv_add_u32 v6, {sT5}, v6")
            a.I(f"ds_write_b128 v6, v[{src}:{src+3}]\nds_write_b128 v6, v[{src+4}:{src+7}] offset:16")
        else:
            wr_addr()
        a.I(f"v_lshlrev_b32 v7, 3, {vLANE}\nv_add_u32 v7, {sT5}, v7")
        for j in range(4):
            a.I(f"ds_read_b64 v[{vtmp+4*j}:{vtmp+4*j+1}], v7 offset:{512*j}")
        a.I("s_waitcnt lgkmcnt(0)")
        st = [f"buffer_store_dwordx4 v[{vtmp+4*j}:{vtmp+4*j+3}], {vaddr}, {SRD_WS}, {soffs[j][0]} offen offset:{soffs[j][1]}" for j in range(4)]
        if plain:
            for x in st: a.I(x)
        else:
            self.hstore(st, local)

    def maybe_stop(self, k):
        if self.stop == k:
            self.I("s_branch L_end")

    def prologue(self):
        a = self
        a.I("s_cmp_ge_u32 s2, 256\ns_cbranch_scc1 L_exit")
        a.I("s_load_dwordx16 s[64:79], s[0:1], 0\ns_load_dwordx8 s[80:87], s[0:1], 64\ns_load_dwordx4 s[88:91], s[0:1], 96")
        if self.prof:
            a.I("v_mov_b32 v255, 0")
            a.I("s_memrealtime s[0:1]\ns_waitcnt lgkmcnt(0)\nv_writelane_b32 v255, s0, 63")
            a.stamp("start")
        a.I(f"s_and_b32 {sX}, s2, 7\ns_lshr_b32 {sR}, s2, 3")
        a.I(f"v_lshrrev_b32 v2, 6, v0\nv_and_b32 {vLANE}, 63, v0")
        a.I(f"v_readfirstlane_b32 {sW}, v2")
        a.I(f"s_lshl_b32 {sSLOT}, {sX}, 5\ns_add_u32 {sSLOT}, {sSLOT}, {sR}")
        a.I(f"s_mov_b32 {sC4096}, 4096\ns_mov_b32 {sMASKLO}, 0xffff\ns_mov_b32 {sMASKHI}, 0xffff0000")
        a.I(f"s_mov_b32 {sEPS}, {f32bits(1e-5)}")
        a.I(f"s_lshr_b32 {sRH}, {sR}, 4\ns_and_b32 {sCC}, {sR}, 15")
        a.I(f"s_lshr_b32 {sRQ}, {sR}, 3\ns_and_b32 {sNT}, {sR}, 7")
        a.I(f"s_getreg_b32 {sXCC}, hwreg(HW_REG_XCC_ID)\ns_and_b32 {sXCC}, {sXCC}, 15\ns_mov_b32 {sPURE}, 0")
        a.I("s_waitcnt lgkmcnt(0)")
        a.stamp("kernarg")

        def srd(n, lo, size):
            b = int(n[2:n.index(":")])
            a.I(f"s_mov_b32 s{b}, s{lo}\ns_mov_b32 s{b+1}, s{lo+1}\ns_mov_b32 s{b+2}, {size}\ns_mov_b32 s{b+3}, 0x20000")
        srd(SRD_K, 66, 2097152); srd(SRD_V, 68, 2097152); srd(SRD_SK, 70, 4096)
        a.I(f"s_load_dword {sT}, s[90:91], 0")
        a.I(f"s_lshl_b32 {sT0}, {sX}, 7\ns_lshl_b32 {sT1}, {sR}, 2\ns_add_u32 {sT0}, {sT0}, {sT1}")
        a.I(f"s_load_dword {sD0}, s[74:75], {sT0}")
        self.kv_loads()
        srd(SRD_H, 72, 2097152); srd(SRD_Q, 64, 2097152); srd(SRD_WS, 90, WS_SIZE)
        srd(SRD_W1, 78, 512 * 1792 * 2); srd(SRD_B1, 80, 1792 * 2); srd(SRD_W2, 82, 1792 * 512 * 2)
        srd(SRD_B2, 84, 1024); srd(SRD_OUT, 86, 2097152)

    def kv_loads(self):
        a = self
        a.I(f"v_and_b32 v2, 31, {vTID}\nv_lshrrev_b32 v3, 5, {vTID}")
        a.I(f"s_lshl_b32 {sT0}, {sR}, 16\ns_lshl_b32 {sT1}, {sX}, 7\ns_add_u32 {sT0}, {sT0}, {sT1}")
        a.I(f"v_lshlrev_b32 v4, 13, v3\nv_lshl_add_u32 v4, v2, 2, v4\nv_add_u32 v4, {sT0}, v4")
        a.I("v_subrev_u32 v5, 3072, v4")
        a.I("v_cmp_gt_u32 vcc, 1024, v4")
        a.I("v_mov_b32 v6, 0x40000000")
        a.I("v_cndmask_b32 v5, v5, v6, vcc")
        for j in range(3):
            a.I(f"buffer_load_dword v{8+j}, v5, {SRD_K}, 0 offen offset:{j*1024}")
        for j in range(8):
            so = "0" if j < 4 else sC4096
            a.I(f"buffer_load_dword v{11+j}, v4, {SRD_K}, {so} offen offset:{(j%4)*1024}")
        for j in range(8):
            so = "0" if j < 4 else sC4096
            a.I(f"buffer_load_dword v{20+j}, v4, {SRD_V}, {so} offen offset:{(j%4)*1024}")
        a.I(f"s_lshl_b32 {sT0}, {sX}, 9\nv_lshlrev_b32 v6, 4, v2")
        a.I(f"buffer_load_dwordx4 v[28:31], v6, {SRD_SK}, {sT0} offen")

    def other_loads(self):
        a = self
        a.I(f"v_lshlrev_b32 v6, 4, {vTID}\nv_sub_u32 v7, 4080, v6\nv_sub_u32 v6, 4064, v6")
        a.I(f"v_cmp_eq_u32 vcc, 255, {vTID}\nv_mov_b32 v32, 0x40000000\nv_cndmask_b32 v6, v6, v32, vcc")
        a.I(f"s_lshl_b32 {sT0}, {sX}, 18\ns_lshl_b32 {sT1}, {sR}, 13\ns_add_u32 {sT0}, {sT0}, {sT1}\ns_add_u32 {sT1}, {sT0}, 4096")
        a.I(f"buffer_load_dwordx4 v[40:43], v6, {SRD_H}, {sT0} offen")
        a.I(f"buffer_load_dwordx4 v[44:47], v7, {SRD_H}, {sT0} offen")
        a.I(f"buffer_load_dwordx4 v[48:51], v6, {SRD_H}, {sT1} offen")
        a.I(f"buffer_load_dwordx4 v[52:55], v7, {SRD_H}, {sT1} offen")
        self.rowaddr("v33", "v34")
        a.I(f"s_lshl_b32 {sT0}, {sSLOT}, 13")
        for i, off in enumerate((0, 32, 64, 96)):
            a.I(f"buffer_load_dwordx2 a[{224+2*i}:{225+2*i}], v33, {SRD_Q}, {sT0} offen offset:{off}")
        if self.o.get("tlb", 0):
            gran = self.o.get("tlb")
            a.I(f"v_lshlrev_b32 v37, {gran}, {vTID}\nv_add_u32 v37, 0x100000, v37")
            a.I(f"buffer_load_dword v38, v37, {SRD_WS}, 0 offen")
            a.I(f"v_lshlrev_b32 v37, {min(gran,16)}, {vLANE}")
            a.I(f"buffer_load_dword v39, v37, {SRD_W1}, 0 offen")
            a.I(f"buffer_load_dword v39, v37, {SRD_W2}, 0 offen")
            a.I(f"buffer_load_dword v39, v37, {SRD_OUT}, 0 offen")
            self.ntlb = 4

    def w1_dma_setup(self):
        a = self
        a.I(f"s_mov_b32 {sT0}, 4682")
        for i in range(7):
            a.I(f"v_add_u32 v34, {64*i}, {vLANE}\nv_mul_u32_u24 v35, {sT0}, v34\nv_lshrrev_b32 v35, 16, v35")
            a.I(f"v_mul_u32_u24 v36, 14, v35\nv_sub_u32 v36, v34, v36")
            a.I(f"v_mul_u32_u24 v35, 3584, v35\nv_lshl_add_u32 v{148+i}, v36, 4, v35")
        a.I(f"s_mul_i32 s73, {sW}, {128*3584}\ns_mul_i32 {sT2}, {sCC}, 224\ns_add_u32 s73, s73, {sT2}")
        a.I(f"s_mul_i32 s74, {sW}, 28672")

    def w1_dma_list(self):
        out = []
        for g in range(4):
            for i in range(7):
                x = f"s_add_u32 m0, s74, {L_W1 + g*7168 + i*1024}\n"
                if g > 0 and i == 0:
                    x = f"s_add_u32 s73, s73, {32*3584}\n" + x
                out.append(x + f"buffer_load_dwordx4 v{148+i}, {SRD_W1}, s73 offen lds")
        return out

    def rowaddr(self, vd, vt):
        a = self
        a.I(f"v_lshrrev_b32 {vd}, 5, {vTID}\nv_lshlrev_b32 {vd}, 10, {vd}")
        a.I(f"v_bfe_u32 {vt}, {vTID}, 2, 3\nv_lshl_add_u32 {vd}, {vt}, 7, {vd}")
        a.I(f"v_and_b32 {vt}, 3, {vTID}\nv_lshl_add_u32 {vd}, {vt}, 3, {vd}")

    def tags_into(self, quads):
        for q in quads:
            self.I(f"v_mov_b32 v{q+2}, {sT}\nv_mov_b32 v{q+3}, {sTH}")

    def p0_compute(self, younger):
        a = self
        self.tags_into((104, 108, 112, 116))
        a.stamp("epoch")
        a.I(f"s_waitcnt vmcnt({younger})")
        a.stamp("kv arrived")
        for c in range(2):
            for h in range(2):
                src = 28 + 2 * c + h
                a.I(f"v_lshlrev_b32 v{56+4*c+2*h}, 16, v{src}\nv_and_b32 v{57+4*c+2*h}, {sMASKHI}, v{src}")
        for j in range(11):
            a.I(f"v_lshlrev_b32 v{64+j}, 16, v{8+j}\nv_and_b32 v{76+j}, {sMASKHI}, v{8+j}")
        for c in range(2):
            kb = 64 + 12 * c
            wb = 56 + 4 * c
            for j in range(8):
                a.I(f"v_mul_f32 v{88+8*c+j}, v{kb+j+3}, v{wb}")
            for i in range(1, 4):
                for j in range(8):
                    a.I(f"v_fmac_f32 v{88+8*c+j}, v{kb+j+3-i}, v{wb+i}")
        for j in range(8):
            a.I(f"v_lshlrev_b32 v{64+j}, 16, v{20+j}\nv_and_b32 v{76+j}, {sMASKHI}, v{20+j}")
        for c in range(2):
            for j in range(8):
                a.I(f"v_mul_f32 v{88+8*c+j}, v{88+8*c+j}, v{64+12*c+j}")
        for c in range(2):
            for j in range(4):
                a.I(f"v_cvt_pk_bf16_f32 v{64+4*c+j}, v{88+8*c+2*j}, v{88+8*c+2*j+1}")
        a.I(f"v_lshrrev_b32 v4, 2, {vLANE}\nv_lshlrev_b32 v4, 14, v4\nv_and_b32 v5, 3, {vLANE}\nv_lshl_add_u32 v4, v5, 4, v4")
        a.I(f"s_lshl_b32 {sT0}, {sX}, 19\ns_lshl_b32 {sT1}, {sR}, 9\ns_add_u32 {sT0}, {sT0}, {sT1}\ns_lshl_b32 {sT1}, {sW}, 7\ns_add_u32 {sT0}, {sT0}, {sT1}")
        a.I(f"s_add_u32 {sT0}, {sT0}, {WS_KVT}\ns_add_u32 {sT1}, {sT0}, {16*16384}")
        self.ctag_store(64, f"s_lshl_b32 {sT5}, {sW}, 11\ns_add_u32 {sT5}, {sT5}, {L_P0T}", "v4",
                        [(sT0, 0), (sT1, 0), (sT0, 64), (sT1, 64)], False, vtmp=104, plain=self.o.get("plain_a"))

    def toeplitz_build(self):
        a = self
        a.I("v_mov_b32 v56, 0\nv_mov_b32 v57, 0\nv_mov_b32 v58, 0\nv_mov_b32 v59, 0")
        a.I(f"v_lshrrev_b32 v2, 5, {vTID}\nv_mul_u32_u24 v2, {PS}, v2\nv_and_b32 v3, 31, {vTID}\nv_lshl_add_u32 v2, v3, 4, v2\nv_add_u32 v2, {L_UPL}, v2")
        a.I(f"ds_write_b128 v2, v[56:59]")
        a.I(f"v_bfe_u32 v2, {vLANE}, 2, 3\nv_mul_u32_u24 v2, {CS}, v2\nv_and_b32 v3, 3, {vLANE}\nv_lshl_add_u32 v2, v3, 4, v2\nv_add_u32 v2, {L_TOEP+4096}, v2")
        a.I(f"ds_write_b128 v2, v[56:59]")
        a.I(f"v_lshlrev_b32 v2, 4, {vTID}\nv_add_u32 v2, {L_TOEP}, v2")
        for c in range(2):
            W = lambda k: f"v{40+8*c+k}"
            b0 = 60 + 20 * c
            for i in range(4): a.I(f"v_alignbit_b32 v{b0+i}, {W(7-i)}, {W(7-i)}, 16")
            for i in range(4): a.I(f"v_alignbit_b32 v{b0+4+i}, {W(6-i)}, {W(6-i)}, 16")
            for i in range(4): a.I(f"v_bfi_b32 v{b0+8+i}, {sMASKLO}, {W(7-i)}, {W(6-i)}")
            for i in range(4): a.I(f"v_bfi_b32 v{b0+12+i}, {sMASKLO}, {W(6-i)}, {W(5-i)}")
            for q, base in ((0, b0), (2, b0 + 4), (1, b0 + 8), (3, b0 + 12)):
                a.I(f"ds_write_b128 v2, v[{base}:{base+3}] offset:{(c * 4 + q) * CS}")

    def hop_a(self):
        a = self
        a.I(f"v_lshlrev_b32 v2, 4, {vLANE}\ns_lshl_b32 {sT0}, {sSLOT}, 14\ns_add_u32 {sT0}, {sT0}, {WS_KVT}\ns_lshl_b32 {sT1}, {sW}, 12\ns_add_u32 {sT0}, {sT0}, {sT1}")
        a.I(f"v_bfe_u32 v3, {vLANE}, 1, 1\nv_mul_u32_u24 v3, {4*PS}, v3\nv_bfe_u32 v4, {vLANE}, 2, 2\nv_mul_u32_u24 v4, {PS}, v4\nv_add_u32 v3, v3, v4")
        a.I(f"v_lshrrev_b32 v4, 4, {vLANE}\nv_lshl_add_u32 v3, v4, 4, v3\nv_and_b32 v4, 1, {vLANE}\nv_lshl_add_u32 v3, v4, 3, v3")
        a.I(f"s_lshl_b32 {sT1}, {sW}, 8\ns_add_u32 {sT1}, {sT1}, {L_UPL+512}\nv_add_u32 v3, {sT1}, v3")
        self.tagpoll("v2", sT0, (0, 1024, 2048, 3072), 8)
        for j in range(4):
            a.I(f"ds_write_b64 v3, v[{8+4*j}:{9+4*j}] offset:{64*j}")
        a.I("s_waitcnt lgkmcnt(0)\ns_barrier")

    def w2_rows(self, kap_local):
        cp, i = divmod(kap_local, 7)
        base = 224 * cp
        if i < 3: starts = [base + 32 * i + 8 * g for g in range(4)]
        elif i < 6: starts = [base + 112 + 32 * (i - 3) + 8 * g for g in range(4)]
        else: starts = [base + 96, base + 104, base + 208, base + 216]
        return starts

    def w2_setup(self, vreg):
        a = self
        a.I(f"v_lshrrev_b32 {vreg}, 3, {vLANE}\nv_lshlrev_b32 {vreg}, 10, {vreg}\nv_and_b32 v5, 7, {vLANE}\nv_lshl_add_u32 {vreg}, v5, 4, {vreg}")
        a.I(f"s_lshl_b32 {sT2}, {sNT}, 7\nv_add_u32 {vreg}, {sT2}, {vreg}")
        a.I(f"s_mul_i32 {sT3}, {sW}, {448*1024}")

    def w2_load_list(self, vreg):
        out = []
        for k in range(14):
            for g, st in enumerate(self.w2_rows(k)):
                d = (k * 4 + g) * 4
                out.append(f"s_add_u32 {sT2}, {sT3}, {st*1024}\nbuffer_load_dwordx4 a[{d}:{d+3}], {vreg}, {SRD_W2}, {sT2} offen")
        return out

    def conv_main(self):
        a = self
        self.w2_setup("v144")
        w2l = self.w2_load_list("v144")
        a.I(f"s_and_b32 {sT1}, {sW}, 1\ns_lshr_b32 {sT4}, {sW}, 1")
        a.I(f"v_and_b32 v4, 3, {vLANE}\nv_sub_u32 v4, 3, v4\nv_mul_u32_u24 v2, {CS}, v4")
        a.I(f"v_bfe_u32 v4, {vLANE}, 2, 3\nv_lshlrev_b32 v4, 3, v4\nv_sub_u32 v2, v2, v4")
        a.I(f"v_lshrrev_b32 v5, 5, {vLANE}\nv_lshl_add_u32 v2, v5, 4, v2")
        a.I(f"s_mul_i32 {sT0}, {sT1}, {4*CS}\ns_lshl_b32 {sT5}, {sT4}, 10\ns_sub_u32 {sT0}, {sT0}, {sT5}\ns_add_u32 {sT0}, {sT0}, {L_TOEP+1080}")
        a.I(f"v_add_u32 v2, {sT0}, v2")
        a.I(f"v_mul_u32_u24 v3, {PS}, v5\nv_and_b32 v4, 31, {vLANE}\nv_lshl_add_u32 v3, v4, 4, v3")
        a.I(f"s_mul_i32 {sT0}, {sT1}, {4*PS}\ns_lshl_b32 {sT5}, {sT4}, 8\ns_sub_u32 {sT0}, {sT0}, {sT5}\ns_add_u32 {sT0}, {sT0}, {L_UPL+17*16}")
        a.I(f"v_add_u32 v3, {sT0}, v3")
        for i in range(64, 96):
            a.I(f"v_mov_b32 v{i}, 0")

        def reads(tp):
            b = 96 + 16 * (tp % 3)
            boff = (15 - (tp - 1) // 2) * 16 if tp % 2 == 1 else 2 * PS + (15 - tp // 2) * 16
            a.I(f"ds_read_b64 v[{b}:{b+1}], v2 offset:{3040-32*tp}")
            a.I(f"ds_read_b64 v[{b+2}:{b+3}], v2 offset:{3048-32*tp}")
            a.I(f"ds_read_b128 v[{b+4}:{b+7}], v3 offset:{boff+512}")
            a.I(f"ds_read_b128 v[{b+8}:{b+11}], v3 offset:{boff}")
            a.I(f"ds_read_b64 v[{b+12}:{b+13}], v2 offset:{992-32*tp}")
            a.I(f"ds_read_b64 v[{b+14}:{b+15}], v2 offset:{1000-32*tp}")
        reads(0); reads(1)
        per = self.o.get("w2_per_step", 2)
        for tp in range(32):
            a.I("s_waitcnt lgkmcnt(6)" if tp + 1 < 32 else "s_waitcnt lgkmcnt(0)")
            b = 96 + 16 * (tp % 3)
            a.I(f"v_mfma_f32_32x32x16_bf16 v[80:95], v[{b}:{b+3}], v[{b+4}:{b+7}], v[80:95]")
            if tp + 2 < 32: reads(tp + 2)
            if w2l and per >= 1: a.I(w2l.pop(0))
            a.I(f"v_mfma_f32_32x32x16_bf16 v[64:79], v[{b}:{b+3}], v[{b+8}:{b+11}], v[64:79]")
            if w2l and per >= 2: a.I(w2l.pop(0))
            a.I(f"v_mfma_f32_32x32x16_bf16 v[80:95], v[{b+12}:{b+15}], v[{b+8}:{b+11}], v[80:95]")
        for x in w2l: a.I(x)

    def conv_epilogue(self):
        a = self
        self.tags_into((144, 148, 152, 156))
        a.I("s_barrier")
        a.I(f"s_lshl_b32 {sT0}, {sW}, 13\ns_add_u32 {sT0}, {sT0}, {L_XCH}\nv_lshlrev_b32 v2, 4, {vLANE}\nv_add_u32 v3, {sT0}, v2")
        for dst in range(4):
            part, rh = dst >> 1, dst & 1
            b = 64 + 16 * part + 8 * rh
            for h in range(2):
                a.I(f"ds_write_b128 v3, v[{b+4*h}:{b+4*h+3}] offset:{dst*2048 + h*1024}")
        a.I(f"s_and_b32 {sT1}, {sW}, 1\ns_lshr_b32 {sT2}, {sW}, 1")
        a.I(f"v_and_b32 v4, 31, {vLANE}\nv_lshlrev_b32 v4, 4, v4\nv_lshrrev_b32 v5, 5, {vLANE}\nv_lshl_add_u32 v4, v5, 3, v4")
        a.I(f"s_mul_i32 {sT3}, {sT1}, {2*PS}\ns_lshl_b32 {sT4}, {sT2}, 9\ns_add_u32 {sT3}, {sT3}, {sT4}\ns_add_u32 {sT3}, {sT3}, {L_UPL+512}")
        a.I(f"v_add_u32 v4, {sT3}, v4")
        for c in range(2):
            for g in range(2):
                d = 96 + 4 * c + 2 * g
                a.I(f"ds_read_b64 v[{d}:{d+1}], v4 offset:{c*4*PS + g*PS}")
        a.I("s_waitcnt lgkmcnt(0)\ns_barrier")
        a.I(f"s_lshl_b32 {sT0}, {sW}, 11\ns_add_u32 {sT0}, {sT0}, {L_XCH}\nv_add_u32 v3, {sT0}, v2")
        for src in range(4):
            for h in range(2):
                d = 104 + 8 * src + 4 * h
                a.I(f"ds_read_b128 v[{d}:{d+3}], v3 offset:{src*8192 + h*1024}")
        a.I(f"s_lshl_b32 {sT4}, {sD0}, 16\ns_and_b32 {sT5}, {sD0}, {sMASKHI}")
        for c in range(2):
            for g in range(2):
                for h in range(2):
                    s = 96 + 4 * c + 2 * g + h
                    d = 64 + 8 * c + 4 * g + 2 * h
                    a.I(f"v_lshlrev_b32 v{d}, 16, v{s}\nv_and_b32 v{d+1}, {sMASKHI}, v{s}")
        a.I("s_waitcnt lgkmcnt(0)")
        for c in range(2):
            sd = sT4 if c == 0 else sT5
            for e in range(8):
                a.I(f"v_add_f32 v{104+8*c+e}, v{104+8*c+e}, v{104+8*(c+2)+e}")
            for e in range(8):
                a.I(f"v_fmac_f32 v{104+8*c+e}, {sd}, v{64+8*c+e}")
        for e in range(8):
            a.I(f"v_cvt_pk_bf16_f32 v{80+e}, v{104+e}, v{112+e}")
        a.I(f"v_lshrrev_b32 v4, 2, {vLANE}\nv_lshlrev_b32 v4, 16, v4\nv_and_b32 v8, 3, {vLANE}\nv_lshl_add_u32 v4, v8, 4, v4")
        a.I(f"s_lshl_b32 {sT3}, {sT2}, 21\ns_lshl_b32 {sT0}, {sT1}, 15\ns_add_u32 {sT3}, {sT3}, {sT0}")
        a.I(f"s_lshl_b32 {sT0}, {sSLOT}, 6\ns_add_u32 {sT3}, {sT3}, {sT0}\ns_add_u32 {sT0}, {sT3}, {WS_Y}")
        a.I(f"s_add_u32 {sT1}, {sT0}, {16*65536}\ns_add_u32 {sT2}, {sT0}, 16384\ns_add_u32 {sT3}, {sT1}, 16384")

        def wr():
            a.I(f"v_and_b32 v6, 31, {vLANE}\nv_lshlrev_b32 v6, 5, v6\nv_lshl_add_u32 v6, v5, 4, v6\nv_add_u32 v6, {sT5}, v6")
            a.I(f"ds_write_b128 v6, v[80:83]\nds_write_b128 v6, v[84:87] offset:1024")
        self.ctag_store(80, f"s_lshl_b32 {sT5}, {sW}, 11\ns_add_u32 {sT5}, {sT5}, {L_CT}", "v4",
                        [(sT0, 0), (sT1, 0), (sT2, 0), (sT3, 0)], False, vtmp=144, wr_addr=wr)
        a.I("s_barrier")

    def pretouch(self):
        a = self
        a.I(f"s_lshl_b32 {sT0}, {sX}, 4\ns_lshl_b32 {sT1}, {sRH}, 3\ns_add_u32 {sT0}, {sT0}, {sT1}\ns_lshl_b32 {sT1}, {sW}, 1\ns_add_u32 {sT0}, {sT0}, {sT1}")
        a.I(f"s_mul_i32 {sT0}, {sT0}, 57344\ns_add_u32 {sT0}, {sT0}, {WS_H1}")
        a.I(f"s_lshr_b32 {sT1}, {sCC}, 1\ns_mul_i32 {sT1}, {sT1}, 7168\ns_add_u32 {sT0}, {sT0}, {sT1}")
        a.I(f"s_and_b32 {sT2}, {sCC}, 1\ns_mul_i32 {sT2}, {sT2}, 3072")
        a.I(f"v_and_b32 v2, 31, {vLANE}\nv_lshlrev_b32 v3, 7, v2\nv_add_u32 v4, {sT2}, v3")
        a.I(f"v_add_u32 v3, {6144-24*128}, v3\nv_cmp_gt_u32 vcc, 24, v2\nv_cndmask_b32 v3, v3, v4, vcc")
        a.I(f"v_lshrrev_b32 v2, 5, {vLANE}\nv_mul_u32_u24 v2, 57344, v2\nv_add_u32 v3, v3, v2")
        a.I(f"buffer_load_dword v160, v3, {SRD_WS}, {sT0} offen")
        a.I(f"v_bfe_u32 v2, {vLANE}, 1, 4\nv_lshlrev_b32 v2, 11, v2\nv_and_b32 v3, 1, {vLANE}\nv_lshl_add_u32 v2, v3, 7, v2")
        a.I(f"s_lshl_b32 {sT0}, {sX}, 19\ns_lshl_b32 {sT1}, {sRQ}, 17\ns_add_u32 {sT0}, {sT0}, {sT1}\ns_lshl_b32 {sT1}, {sW}, 15\ns_add_u32 {sT0}, {sT0}, {sT1}")
        a.I(f"s_lshl_b32 {sT1}, {sNT}, 8\ns_add_u32 {sT0}, {sT0}, {sT1}\ns_add_u32 {sT0}, {sT0}, {WS_O}")
        a.I(f"buffer_load_dword v161, v2, {SRD_WS}, {sT0} offen")
        a.I(f"v_lshlrev_b32 v2, 8, {vLANE}")
        a.I(f"s_lshl_b32 {sT0}, {sX}, 18\ns_lshr_b32 {sT1}, {sR}, 1\ns_lshl_b32 {sT1}, {sT1}, 14\ns_add_u32 {sT0}, {sT0}, {sT1}")
        a.I(f"s_and_b32 {sT1}, {sR}, 1\ns_lshl_b32 {sT1}, {sT1}, 7\ns_add_u32 {sT0}, {sT0}, {sT1}\ns_add_u32 {sT0}, {sT0}, {WS_Z1}")
        a.I(f"buffer_load_dword v162, v2, {SRD_WS}, {sT0} offen")
        a.I(f"v_lshlrev_b32 v2, 7, {vLANE}\ns_lshl_b32 {sT0}, {sSLOT}, 13\ns_add_u32 {sT0}, {sT0}, {WS_X3}")
        a.I(f"buffer_load_dword v163, v2, {SRD_WS}, {sT0} offen")

    def w2_convert(self, extra):
        a = self
        a.I(f"v_lshrrev_b32 v2, 3, {vLANE}\nv_mul_u32_u24 v2, 160, v2\nv_and_b32 v3, 7, {vLANE}\nv_lshl_add_u32 v2, v3, 4, v2")
        a.I(f"s_mul_i32 {sT0}, {sW}, 10240\ns_add_u32 {sT0}, {sT0}, {L_SCR}\nv_add_u32 v2, {sT0}, v2")
        a.I(f"v_lshrrev_b32 v3, 2, {vLANE}\nv_mul_u32_u24 v3, 160, v3\nv_and_b32 v4, 3, {vLANE}\nv_lshl_add_u32 v3, v4, 3, v3\nv_add_u32 v3, {sT0}, v3")
        for k in range(14):
            buf = (k % 2) * 5120
            for g in range(4):
                d = (k * 4 + g) * 4
                a.I(f"ds_write_b128 v2, a[{d}:{d+3}] offset:{buf + g*1280}")
                if extra and g % 2 == 1: a.I(extra.pop(0))
            for aa in range(4):
                for hh in range(2):
                    ar = (k * 4 + aa) * 4 + 2 * hh
                    a.I(f"ds_read_b64_tr_b16 a[{ar}:{ar+1}], v3 offset:{buf + hh*16*160 + aa*32}")
        for x in extra: a.I(x)
        a.I("s_waitcnt lgkmcnt(0)")

    def allreduce32(self, ra, rb, tmp1, tmp2):
        a = self
        for sh in (8, 4, 2, 1):
            a.I(f"v_add_f32_dpp {ra}, {ra}, {ra} row_ror:{sh} row_mask:0xf bank_mask:0xf")
            a.I(f"v_add_f32_dpp {rb}, {rb}, {rb} row_ror:{sh} row_mask:0xf bank_mask:0xf")
        a.I(f"v_mov_b32 {tmp1}, {ra}\nv_mov_b32 {tmp2}, {rb}")
        a.I(f"v_permlane16_swap_b32 {ra}, {tmp1}\nv_permlane16_swap_b32 {rb}, {tmp2}")
        a.I(f"v_add_f32 {ra}, {ra}, {tmp1}\nv_add_f32 {rb}, {rb}, {tmp2}")

    def stats(self, xb, vs, vq):
        a = self
        a.I(f"v_add_f32 {vs}, v{xb}, v{xb+1}\nv_mul_f32 {vq}, v{xb}, v{xb}\nv_add_f32 v6, v{xb+2}, v{xb+3}\nv_mul_f32 v7, v{xb+2}, v{xb+2}")
        a.I(f"v_fmac_f32 {vq}, v{xb+1}, v{xb+1}\nv_fmac_f32 v7, v{xb+3}, v{xb+3}")
        for e in range(4, 16, 2):
            a.I(f"v_add_f32 {vs}, {vs}, v{xb+e}\nv_fmac_f32 {vq}, v{xb+e}, v{xb+e}\nv_add_f32 v6, v6, v{xb+e+1}\nv_fmac_f32 v7, v{xb+e+1}, v{xb+e+1}")
        a.I(f"v_add_f32 {vs}, {vs}, v6\nv_add_f32 {vq}, {vq}, v7")
        self.allreduce32(vs, vq, "v6", "v7")
        a.I(f"v_mul_f32 {vs}, {f32bits(1/512)}, {vs}\nv_mul_f32 {vq}, {f32bits(1/512)}, {vq}")
        a.I(f"v_fma_f32 {vq}, -{vs}, {vs}, {vq}\nv_max_f32 {vq}, 0, {vq}")

    def r_core(self, x3store):
        a = self
        self.stats(16, "v4", "v5")
        a.I(f"v_add_f32 v5, {sEPS}, v5\nv_rsq_f32 v5, v5")
        for e in range(16):
            a.I(f"v_sub_f32 v{48+e}, v{16+e}, v4")
        for e in range(16):
            a.I(f"v_mul_f32 v{48+e}, v{48+e}, v5")
        for e in range(16):
            a.I(f"v_fmac_f32 v{16+e}, v{48+e}, v{32+e}")
        for j in range(8):
            a.I(f"v_cvt_pk_bf16_f32 v{48+j}, v{16+2*j}, v{16+2*j+1}")
        for j in range(8):
            a.I(f"v_lshlrev_b32 v{16+2*j}, 16, v{48+j}\nv_and_b32 v{16+2*j+1}, {sMASKHI}, v{48+j}")
        if x3store:
            a.I(f"v_lshrrev_b32 v8, 5, {vTID}\nv_lshlrev_b32 v8, 10, v8\nv_bfe_u32 v9, {vTID}, 2, 3\nv_lshl_add_u32 v8, v9, 7, v8\nv_and_b32 v9, 3, {vTID}\nv_lshl_add_u32 v8, v9, 4, v8")
            a.I(f"s_lshl_b32 {sT0}, {sSLOT}, 13\ns_add_u32 {sT0}, {sT0}, {WS_X3}")
            self.hstore([f"buffer_store_dwordx4 v[48:51], v8, {SRD_WS}, {sT0} offen",
                         f"buffer_store_dwordx4 v[52:55], v8, {SRD_WS}, {sT0} offen offset:64"])
        else:
            for j in range(8):
                a.I(f"v_accvgpr_write_b32 a{224+j}, v{48+j}")
        self.stats(16, "v4", "v5")
        a.I(f"v_add_f32 v6, {sEPS}, v5\nv_rsq_f32 v7, v6\nv_rcp_f32 v6, v6")
        a.I(f"v_mul_f32 v6, v5, v6\nv_add_f32 v6, {sEPS}, v6\nv_rsq_f32 v6, v6\nv_mul_f32 v5, v7, v6")
        for e in range(16):
            a.I(f"v_sub_f32 v{16+e}, v{16+e}, v4")
        for e in range(16):
            a.I(f"v_mul_f32 v{16+e}, v{16+e}, v5")
        for j in range(8):
            a.I(f"v_cvt_pk_bf16_f32 v{56+j}, v{16+2*j}, v{16+2*j+1}")
        a.I(f"v_bfe_u32 v8, {vTID}, 2, 3\nv_lshlrev_b32 v8, 11, v8\nv_and_b32 v9, 3, {vTID}\nv_lshl_add_u32 v8, v9, 8, v8")
        a.I(f"v_lshrrev_b32 v9, 5, {vTID}\nv_lshl_add_u32 v8, v9, 4, v8")
        a.I(f"s_lshl_b32 {sT0}, {sX}, 18\ns_lshr_b32 {sT1}, {sR}, 1\ns_lshl_b32 {sT1}, {sT1}, 14\ns_add_u32 {sT0}, {sT0}, {sT1}")
        a.I(f"s_and_b32 {sT1}, {sR}, 1\ns_lshl_b32 {sT1}, {sT1}, 7\ns_add_u32 {sT0}, {sT0}, {sT1}\ns_add_u32 {sT0}, {sT0}, {sZB}")
        self.hstore([f"buffer_store_dwordx4 v[56:59], v8, {SRD_WS}, {sT0} offen",
                     f"buffer_store_dwordx4 v[60:63], v8, {SRD_WS}, {sT0} offen offset:1024"])

    def r1(self):
        a = self
        a.I(f"v_lshlrev_b32 v2, 4, {vLANE}\ns_lshl_b32 {sT0}, {sSLOT}, 14\ns_add_u32 {sT0}, {sT0}, {WS_Y}\ns_lshl_b32 {sT1}, {sW}, 12\ns_add_u32 {sT0}, {sT0}, {sT1}")
        a.I(f"v_and_b32 v3, 3, {vLANE}\nv_lshlrev_b32 v3, 11, v3\nv_lshrrev_b32 v4, 2, {vTID}\nv_bfe_u32 v4, {vLANE}, 2, 4\nv_lshl_add_u32 v3, v4, 2, v3")
        a.I(f"s_lshl_b32 {sT1}, {sW}, 8\ns_add_u32 {sT1}, {sT1}, {L_YT}\nv_add_u32 v3, {sT1}, v3")
        for j in range(8):
            a.I(f"v_accvgpr_read_b32 v{48+j}, a{224+j}")
        for j in range(8):
            a.I(f"v_lshlrev_b32 v{16+2*j}, 16, v{48+j}\nv_and_b32 v{16+2*j+1}, {sMASKHI}, v{48+j}")
        self.tagpoll("v2", sT0, (0, 1024, 2048, 3072), 64, sleep=4)
        a.stamp("y arrived")
        for j in range(4):
            a.I(f"v_add_u32 v4, {64*j}, v3")
            a.I(f"ds_write2st64_b32 v4, v{64+4*j}, v{65+4*j} offset0:0 offset1:4")
        self.rowaddr("v4", "v5")
        a.I(f"v_add_u32 v4, {L_YT}, v4")
        a.I("s_waitcnt lgkmcnt(0)\ns_barrier")
        for i, off in enumerate((0, 32, 64, 96)):
            a.I(f"ds_read_b64 v[{8+2*i}:{9+2*i}], v4 offset:{off}")
        a.I("s_waitcnt lgkmcnt(0)")
        for j in range(8):
            a.I(f"v_lshlrev_b32 v{32+2*j}, 16, v{8+j}\nv_and_b32 v{32+2*j+1}, {sMASKHI}, v{8+j}")
            a.I(f"v_accvgpr_write_b32 a{232+j}, v{8+j}")
        self.r_core(False)

    def r2(self):
        a = self
        a.I(f"v_lshlrev_b32 v8, 4, {vLANE}")
        a.I(f"s_lshl_b32 {sT0}, {sSLOT}, 14\ns_add_u32 {sT0}, {sT0}, {WS_O}\ns_lshl_b32 {sT1}, {sW}, 12\ns_add_u32 {sT0}, {sT0}, {sT1}")
        for j in range(8):
            a.I(f"v_accvgpr_read_b32 v{48+j}, a{224+j}\nv_accvgpr_read_b32 v{56+j}, a{232+j}")
        for j in range(8):
            a.I(f"v_lshlrev_b32 v{16+2*j}, 16, v{48+j}\nv_and_b32 v{16+2*j+1}, {sMASKHI}, v{48+j}")
            a.I(f"v_lshlrev_b32 v{32+2*j}, 16, v{56+j}\nv_and_b32 v{32+2*j+1}, {sMASKHI}, v{56+j}")
        a.I(f"s_lshl_b32 {sT5}, {sW}, 11\ns_add_u32 {sT5}, {sT5}, {L_CT}")
        a.I(f"v_lshlrev_b32 v6, 3, {vLANE}\nv_add_u32 v6, {sT5}, v6\nv_lshlrev_b32 v7, 5, {vLANE}\nv_add_u32 v7, {sT5}, v7")
        self.tagpoll("v8", sT0, (0, 1024, 2048, 3072), 64, sleep=1)
        a.stamp("o arrived")
        for j in range(4):
            a.I(f"ds_write_b64 v6, v[{64+4*j}:{65+4*j}] offset:{512*j}")
        a.I("ds_read_b128 v[64:67], v7\nds_read_b128 v[68:71], v7 offset:16\ns_waitcnt lgkmcnt(0)")
        for j in range(8):
            a.I(f"v_lshlrev_b32 v{48+2*j}, 16, v{64+j}\nv_and_b32 v{48+2*j+1}, {sMASKHI}, v{64+j}")
        for e in range(16):
            a.I(f"v_add_f32 v{16+e}, v{16+e}, v{48+e}")
        for j in range(8):
            a.I(f"v_cvt_pk_bf16_f32 v{48+j}, v{16+2*j}, v{16+2*j+1}")
        for j in range(8):
            a.I(f"v_lshlrev_b32 v{16+2*j}, 16, v{48+j}\nv_and_b32 v{16+2*j+1}, {sMASKHI}, v{48+j}")
        self.r_core(True)

    def gemm1_pre(self):
        a = self
        a.I(f"v_lshrrev_b32 v2, 4, {vLANE}\nv_lshlrev_b32 v2, 3, v2\ns_mul_i32 {sT0}, {sCC}, 224")
        for aa in range(7):
            a.I(f"buffer_load_dwordx2 v[{64+2*aa}:{65+2*aa}], v2, {SRD_B1}, {sT0} offen offset:{32*aa}")
        a.I("s_waitcnt vmcnt(0)")
        for aa in range(7):
            for rt in range(2):
                d = 8 + (aa * 2 + rt) * 4
                for h in range(2):
                    s = 64 + 2 * aa + h
                    a.I(f"v_lshlrev_b32 v{d+2*h}, 16, v{s}\nv_and_b32 v{d+2*h+1}, {sMASKHI}, v{s}")

    def gemm1(self):
        a = self
        ZB = 120
        a.I(f"v_lshlrev_b32 v2, 4, {vLANE}")
        a.I(f"s_lshl_b32 {sT0}, {sX}, 18\ns_lshl_b32 {sT1}, {sRH}, 17\ns_add_u32 {sT0}, {sT0}, {sT1}")
        a.I(f"s_lshl_b32 {sT1}, {sW}, 15\ns_add_u32 {sT0}, {sT0}, {sT1}\ns_add_u32 {sT0}, {sT0}, {sZB}")
        a.I(f"s_add_u32 {sT1}, {sT0}, 16384")
        PD = self.o.get("g1_pd", 4)

        def zload(t):
            out = []
            for rt in range(2):
                d = ZB + (t * 2 + rt) * 4
                so = sT0 if rt == 0 else sT1
                x = f"buffer_load_dwordx4 v[{d}:{d+3}], v2, {SRD_WS}, {so} offen offset:{(t%4)*1024} sc1"
                if rt == 1 and t % 4 == 3:
                    x += f"\ns_add_u32 {sT0}, {sT0}, 4096\ns_add_u32 {sT1}, {sT1}, 4096"
                out.append(x)
            return out
        for t in range(PD):
            for x in zload(t): a.I(x)
        WB = 64
        a.I(f"v_lshrrev_b32 v3, 2, {vLANE}\nv_mul_u32_u24 v3, 224, v3\nv_and_b32 v4, 3, {vLANE}\nv_lshl_add_u32 v3, v4, 3, v3\nv_add_u32 v4, 57344, v3")

        def wread(t, aa, hh):
            b = WB + 28 * (t % 2)
            base, tt = ("v3", t) if t < 8 else ("v4", t - 8)
            off = L_W1 + (32 * tt + 16 * hh) * 224 + 32 * aa
            return f"ds_read_b64_tr_b16 v[{b+4*aa+2*hh}:{b+4*aa+2*hh+1}], {base} offset:{off}"
        for aa in range(7):
            for hh in range(2): a.I(wread(0, aa, hh))
        for t in range(16):
            b = WB + 28 * (t % 2)
            for aa in range(7):
                lg = 12 if t + 1 < 16 else (7 - aa) * 2 - 2
                if aa == 0:
                    a.I(f"s_waitcnt vmcnt({2*min(PD-1, 15-t)}) lgkmcnt({lg})")
                else:
                    a.I(f"s_waitcnt lgkmcnt({lg})")
                for rt in range(2):
                    d = 8 + (aa * 2 + rt) * 4
                    z = ZB + (t * 2 + rt) * 4
                    a.I(f"v_mfma_f32_16x16x32_bf16 v[{d}:{d+3}], v[{b+4*aa}:{b+4*aa+3}], v[{z}:{z+3}], v[{d}:{d+3}]")
                    if t + 1 < 16:
                        a.I(wread(t + 1, aa, rt))
                    if aa == 1 and t + PD < 16:
                        a.I(zload(t + PD)[rt])
        self.stamp("g1 mfma done")
        c1 = -2.0 * 0.7978845608028654 * 1.4426950408889634
        c2 = c1 * 0.044715
        a.I(f"v_mov_b32 v64, {f32bits(c2)}")
        a.I(f"s_lshl_b32 {sT0}, {sX}, 4\ns_lshl_b32 {sT1}, {sRH}, 3\ns_add_u32 {sT0}, {sT0}, {sT1}\ns_lshl_b32 {sT1}, {sW}, 1\ns_add_u32 {sT0}, {sT0}, {sT1}")
        a.I(f"s_mul_i32 {sT0}, {sT0}, 57344\ns_add_u32 {sT0}, {sT0}, {sHB}")
        a.I(f"s_lshr_b32 {sT1}, {sCC}, 1\ns_mul_i32 {sT1}, {sT1}, 7168\ns_add_u32 {sT0}, {sT0}, {sT1}")
        a.I(f"s_and_b32 {sT2}, {sCC}, 1\ns_mul_i32 {sT1}, {sT2}, 3072\ns_add_u32 {sT1}, {sT0}, {sT1}")
        a.I(f"s_lshl_b32 {sT2}, {sT2}, 3\ns_add_u32 {sT2}, {sT0}, {sT2}\ns_add_u32 {sT2}, {sT2}, 6144")
        a.I(f"s_add_u32 {sT3}, {sT1}, 57344\ns_add_u32 {sT4}, {sT2}, 57344")
        for aa in range(7):
            for rt in range(2):
                d = 8 + (aa * 2 + rt) * 4
                t0 = 68 + 4 * ((aa * 2 + rt) % 2)
                for j in range(4): a.I(f"v_mul_f32 v{t0+j}, v{d+j}, v{d+j}")
                for j in range(4): a.I(f"v_fmaak_f32 v{t0+j}, v64, v{t0+j}, {f32bits(c1)}")
                for j in range(4): a.I(f"v_mul_f32 v{t0+j}, v{t0+j}, v{d+j}")
                for j in range(4): a.I(f"v_exp_f32 v{t0+j}, v{t0+j}")
                for j in range(4): a.I(f"v_add_f32 v{t0+j}, 1.0, v{t0+j}")
                for j in range(4): a.I(f"v_rcp_f32 v{t0+j}, v{t0+j}")
                for j in range(4): a.I(f"v_mul_f32 v{d+j}, v{d+j}, v{t0+j}")
        st = []
        for rt in range(2):
            so1 = sT1 if rt == 0 else sT3
            so2 = sT2 if rt == 0 else sT4
            for i in range(3):
                p = 80 + (rt * 3 + i) * 4
                for h in range(2):
                    d = 8 + ((2 * i + h) * 2 + rt) * 4
                    a.I(f"v_cvt_pk_bf16_f32 v{p+2*h}, v{d}, v{d+1}\nv_cvt_pk_bf16_f32 v{p+2*h+1}, v{d+2}, v{d+3}")
                st.append(f"buffer_store_dwordx4 v[{p}:{p+3}], v2, {SRD_WS}, {so1} offen offset:{i*1024}")
            d = 8 + (6 * 2 + rt) * 4
            p = 104 + 2 * rt
            a.I(f"v_cvt_pk_bf16_f32 v{p}, v{d}, v{d+1}\nv_cvt_pk_bf16_f32 v{p+1}, v{d+2}, v{d+3}")
            st.append(f"buffer_store_dwordx2 v[{p}:{p+1}], v2, {SRD_WS}, {so2} offen")
        self.hstore(st)

    def gemm2(self, final):
        a = self
        a.I(f"v_lshlrev_b32 v2, 4, {vLANE}")
        a.I(f"s_lshl_b32 {sT0}, {sX}, 4\ns_lshl_b32 {sT1}, {sRQ}, 2\ns_add_u32 {sT0}, {sT0}, {sT1}\ns_mul_i32 {sT0}, {sT0}, 57344")
        a.I(f"s_mul_i32 {sT1}, {sW}, 14336\ns_add_u32 {sT0}, {sT0}, {sT1}\ns_add_u32 {sT0}, {sT0}, {sHB}")

        if final:
            a.I(f"v_and_b32 v4, 15, {vLANE}\nv_lshlrev_b32 v4, 10, v4\nv_lshrrev_b32 v5, 4, {vLANE}\nv_lshl_add_u32 v4, v5, 4, v4")
            a.I(f"s_lshl_b32 {sT2}, {sX}, 18\ns_lshl_b32 {sT3}, {sRQ}, 16\ns_add_u32 {sT2}, {sT2}, {sT3}\ns_lshl_b32 {sT3}, {sW}, 14\ns_add_u32 {sT2}, {sT2}, {sT3}")
            a.I(f"s_lshl_b32 {sT3}, {sNT}, 7\ns_add_u32 {sT2}, {sT2}, {sT3}\ns_add_u32 {sT2}, {sT2}, {WS_X3}")
        PD = self.o.get("g2_pd", 14)
        for idx in range(4):
            a.I(f"s_add_u32 {sT1}, {sW}, {1+idx}\ns_and_b32 {sT1}, {sT1}, 3\ns_mul_i32 {sT1}, {sT1}, 57344\ns_add_u32 s{76+idx}, {sT1}, {sT0}")

        def hload(n):
            idx, k = divmod(n, 14)
            b = 40 + 4 * (n % 42)
            x = ""
            if k % 4 == 0 and k > 0:
                x = f"s_add_u32 s{76+idx}, s{76+idx}, 4096\n"
            return x + f"buffer_load_dwordx4 v[{b}:{b+3}], v2, {SRD_WS}, s{76+idx} offen offset:{(k%4)*1024} sc1"
        for n in range(PD): a.I(hload(n))
        if final:
            a.I(f"buffer_load_dwordx4 v[208:211], v4, {SRD_WS}, {sT2} offen sc1")
            a.I(f"buffer_load_dwordx4 v[212:215], v4, {SRD_WS}, {sT2} offen offset:64 sc1")
        a.I(f"v_lshrrev_b32 v5, 4, {vLANE}\nv_lshlrev_b32 v5, 3, v5\ns_lshl_b32 {sT2}, {sNT}, 7")
        for aa in range(4):
            a.I(f"buffer_load_dwordx2 v[{216+2*aa}:{217+2*aa}], v5, {SRD_B2}, {sT2} offen offset:{32*aa}")
        extra = 6 if final else 4
        if not final:
            self.tags_into((224, 228, 232, 236))
        a.I(f"v_lshlrev_b32 v3, 4, {vLANE}")
        issued = PD
        for idx in range(4):
            acc = 8 + 16 * (idx % 2)
            for k in range(14):
                n = idx * 14 + k
                b = 40 + 4 * (n % 42)
                younger = (issued - 1 - n) + (extra if n < PD else 0)
                a.I(f"s_waitcnt vmcnt({younger})")
                for aa in range(4):
                    ar = (k * 4 + aa) * 4
                    d = acc + 4 * aa
                    c = "0" if k == 0 else f"v[{d}:{d+3}]"
                    a.I(f"v_mfma_f32_16x16x32_bf16 v[{d}:{d+3}], a[{ar}:{ar+3}], v[{b}:{b+3}], {c}")
                    if aa == 1 and issued < 56:
                        a.I(hload(issued)); issued += 1
            if idx < 3:
                a.I(f"s_add_u32 {sT1}, {sW}, {1+idx}\ns_and_b32 {sT1}, {sT1}, 3\ns_mul_i32 {sT1}, {sT1}, 12288\ns_add_u32 {sT1}, {sT1}, {L_SCR + (2-idx)*4096}")
                a.I(f"v_add_u32 v4, {sT1}, v3")
                for aa in range(4):
                    a.I(f"ds_write_b128 v4, v[{acc+4*aa}:{acc+4*aa+3}] offset:{aa*1024}")
        self.stamp("g2 mfma done")
        a.I("s_waitcnt lgkmcnt(0)\ns_barrier")
        a.I(f"s_mul_i32 {sT1}, {sW}, 12288\ns_add_u32 {sT1}, {sT1}, {L_SCR}\nv_add_u32 v4, {sT1}, v3")
        for s in range(3):
            for aa in range(4):
                d = 40 + s * 16 + aa * 4
                a.I(f"ds_read_b128 v[{d}:{d+3}], v4 offset:{s*4096 + aa*1024}")
        for aa in range(4):
            for h in range(2):
                s = 216 + 2 * aa + h
                a.I(f"v_lshlrev_b32 v{88+4*aa+2*h}, 16, v{s}\nv_and_b32 v{88+4*aa+2*h+1}, {sMASKHI}, v{s}")
        for e in range(16):
            a.I(f"v_add_f32 v{24+e}, v{24+e}, v{88+e}")
        a.I("s_waitcnt lgkmcnt(0)")
        for e in range(16):
            a.I(f"v_add_f32 v{24+e}, v{24+e}, v{40+e}\nv_add_f32 v{56+e}, v{56+e}, v{72+e}")
        for e in range(16):
            a.I(f"v_add_f32 v{24+e}, v{24+e}, v{56+e}")
        if not final:
            for j in range(8):
                a.I(f"v_cvt_pk_bf16_f32 v{40+j}, v{24+2*j}, v{24+2*j+1}")
            a.I("s_barrier")
            a.I(f"v_lshrrev_b32 v4, 4, {vLANE}\nv_lshlrev_b32 v4, 11, v4\nv_and_b32 v5, 15, {vLANE}\nv_lshl_add_u32 v4, v5, 4, v4")
            a.I(f"s_lshl_b32 {sT2}, {sX}, 19\ns_lshl_b32 {sT3}, {sRQ}, 17\ns_add_u32 {sT2}, {sT2}, {sT3}\ns_lshl_b32 {sT3}, {sW}, 15\ns_add_u32 {sT2}, {sT2}, {sT3}")
            a.I(f"s_lshl_b32 {sT3}, {sNT}, 8\ns_add_u32 {sT2}, {sT2}, {sT3}\ns_add_u32 {sT2}, {sT2}, {WS_O}")
            a.I(f"s_add_u32 {sT3}, {sT2}, 8192\ns_add_u32 {sT4}, {sT2}, 16384\ns_add_u32 {sT1}, {sT2}, 24576")
            a.I(f"s_lshl_b32 {sT5}, {sW}, 11\ns_add_u32 {sT5}, {sT5}, {L_CT}")
            a.I(f"v_lshlrev_b32 v6, 5, {vLANE}\nv_add_u32 v6, {sT5}, v6")
            a.I("ds_write_b128 v6, v[40:43]\nds_write_b128 v6, v[44:47] offset:16")
            a.I(f"v_bfe_u32 v7, {vLANE}, 2, 2\nv_lshlrev_b32 v7, 9, v7\nv_lshrrev_b32 v6, 4, {vLANE}\nv_lshl_add_u32 v7, v6, 5, v7\nv_and_b32 v6, 3, {vLANE}\nv_lshl_add_u32 v7, v6, 3, v7\nv_add_u32 v7, {sT5}, v7")
            for j in range(4):
                a.I(f"ds_read_b64 v[{224+4*j}:{225+4*j}], v7 offset:{128*j}")
            a.I("s_waitcnt lgkmcnt(0)")
            self.hstore([f"buffer_store_dwordx4 v[{224+4*j}:{227+4*j}], v4, {SRD_WS}, {(sT2, sT3, sT4, sT1)[j]} offen" for j in range(4)])
        else:
            for j in range(8):
                a.I(f"v_cvt_pk_bf16_f32 v{40+j}, v{24+2*j}, v{24+2*j+1}")
            for j in range(8):
                a.I(f"v_lshlrev_b32 v{24+2*j}, 16, v{40+j}\nv_and_b32 v{24+2*j+1}, {sMASKHI}, v{40+j}")
                a.I(f"v_lshlrev_b32 v{56+2*j}, 16, v{208+j}\nv_and_b32 v{56+2*j+1}, {sMASKHI}, v{208+j}")
            for e in range(16):
                a.I(f"v_add_f32 v{24+e}, v{24+e}, v{56+e}")
            for j in range(8):
                a.I(f"v_cvt_pk_bf16_f32 v{40+j}, v{24+2*j}, v{24+2*j+1}")
            a.I(f"v_and_b32 v4, 15, {vLANE}\nv_lshlrev_b32 v4, 10, v4\nv_lshrrev_b32 v5, 4, {vLANE}\nv_lshl_add_u32 v4, v5, 3, v4")
            a.I(f"s_lshl_b32 {sT2}, {sX}, 18\ns_lshl_b32 {sT3}, {sRQ}, 16\ns_add_u32 {sT2}, {sT2}, {sT3}\ns_lshl_b32 {sT3}, {sW}, 14\ns_add_u32 {sT2}, {sT2}, {sT3}")
            a.I(f"s_lshl_b32 {sT3}, {sNT}, 7\ns_add_u32 {sT2}, {sT2}, {sT3}")
            for aa in range(4):
                a.I(f"buffer_store_dwordx2 v[{40+2*aa}:{41+2*aa}], v4, {SRD_OUT}, {sT2} offen offset:{32*aa}")

    def build(self):
        a = self
        self.stamps = []
        a.prologue()
        a.other_loads()
        a.I("s_waitcnt lgkmcnt(0)")
        a.I(f"s_and_b32 {sT}, {sT}, 0xfffffff0\ns_add_u32 {sT}, {sT}, 0x9e3779b0")
        a.I(f"s_mul_i32 {sTH}, {sT}, 0x85ebca6b\ns_add_u32 {sTH}, {sTH}, 0xc2b2ae35")
        a.I(f"s_lshl_b32 {sT0}, {sSLOT}, 2\ns_add_u32 {sT0}, {sT0}, {WS_FLAGS + HOP_REG * 0x400}")
        a.I(f"s_or_b32 {sT1}, {sT}, {sXCC}\nv_mov_b32 v6, {sT1}\ns_mov_b64 exec, 1")
        a.I(f"buffer_store_dword v6, off, {SRD_WS}, {sT0} sc1\ns_mov_b64 exec, -1")
        a.p0_compute(9 + getattr(self, 'ntlb', 0))
        a.stamp("p0 computed")
        a.I(f"s_waitcnt vmcnt({9 + getattr(self, 'ntlb', 0)})")
        a.toeplitz_build()
        a.stamp("toeplitz")
        if self.o.get("drain_a"):
            a.I("s_waitcnt vmcnt(0)")
            a.stamp("p0 drained")
        a.maybe_stop(1)
        a.hop_a()
        a.stamp("u loaded")
        a.conv_main()
        a.stamp("conv main")
        a.conv_epilogue()
        a.stamp("y stored")
        a.maybe_stop(2)
        a.pretouch()
        a.w1_dma_setup()
        a.I("s_waitcnt vmcnt(8)")
        a.w2_convert(a.w1_dma_list())
        a.stamp("w2 conv")
        a.I(f"s_lshl_b32 {sT5}, {sX}, 5")
        a.poll(HOP_REG, sT5, 32, purity=True)
        a.I(f"s_mov_b32 {sZB}, {WS_Z1}\ns_mov_b32 {sHB}, {WS_H1}")
        a.I("s_barrier")
        a.r1()
        skip = a.lab("ep")
        a.I(f"s_or_b32 {sT0}, {sSLOT}, {sW}\ns_cmp_lg_u32 {sT0}, 0\ns_cbranch_scc1 {skip}")
        a.I(f"v_mov_b32 v2, {sT}\ns_mov_b64 exec, 1\nbuffer_store_dword v2, off, {SRD_WS}, 0 sc1\ns_mov_b64 exec, -1")
        a.a.L(skip)
        a.signal(HOP_C1)
        a.stamp("r1 done")
        a.maybe_stop(3)
        for layer in range(2):
            hopc = HOP_C1 if layer == 0 else HOP_C2
            hopd = HOP_D1 if layer == 0 else HOP_D2
            a.gemm1_pre()
            a.I(f"s_lshl_b32 {sT5}, {sX}, 5\ns_lshl_b32 {sT4}, {sRH}, 4\ns_add_u32 {sT5}, {sT5}, {sT4}")
            a.poll(hopc, sT5, 16)
            a.stamp("c polled")
            a.gemm1()
            a.signal(hopd)
            a.stamp("g1 done")
            a.maybe_stop(4 + 3 * layer)
            a.I(f"s_lshl_b32 {sT5}, {sX}, 5\ns_lshl_b32 {sT4}, {sRH}, 4\ns_add_u32 {sT5}, {sT5}, {sT4}")
            a.poll(hopd, sT5, 16)
            a.stamp("d polled")
            a.gemm2(layer == 1)
            if layer == 0:
                a.stamp("g2 done")
                a.maybe_stop(5)
                a.I(f"s_mov_b32 {sZB}, {WS_Z3}\ns_mov_b32 {sHB}, {WS_H3}\ns_cmp_eq_u32 {sPURE}, 1\ns_cmov_b32 {sZB}, {WS_Z1}\ns_cmov_b32 {sHB}, {WS_H1}")
                a.r2()
                a.signal(HOP_C2)
                a.stamp("r2 done")
                a.maybe_stop(6)
        a.a.L("L_end")
        if self.prof:
            a.I("s_waitcnt vmcnt(0)")
            a.stamp("end")
            skip = a.lab("pf")
            a.I(f"s_cmp_lg_u32 {sW}, 0\ns_cbranch_scc1 {skip}")
            a.I(f"v_writelane_b32 v255, {sPURE}, 62")
            a.I(f"v_lshlrev_b32 v2, 2, {vLANE}\ns_lshl_b32 {sT0}, {sSLOT}, 8\ns_add_u32 {sT0}, {sT0}, {WS_PROF}")
            a.I(f"buffer_store_dword v255, v2, {SRD_WS}, {sT0} offen")
            if self.o.get("dbg"):
                a.I("s_mov_b32 s64, s88\ns_mov_b32 s65, s89\ns_mov_b32 s66, 256\ns_mov_b32 s67, 0x20000")
                a.I("s_memrealtime s[0:1]\ns_waitcnt lgkmcnt(0)")
                a.I("v_readlane_b32 s68, v255, 63\ns_not_b32 s68, s68")
                a.I("v_mov_b32 v3, s68\nv_mov_b32 v4, s0\ns_mov_b64 exec, 1")
                a.I("buffer_atomic_umax v3, off, s[64:67], 0\nbuffer_atomic_umax v4, off, s[64:67], 0 offset:4\ns_mov_b64 exec, -1")
                sk2 = a.lab("dbg")
                a.I(f"s_cmp_lg_u32 {sSLOT}, {self.o.get('dbgslot', 37)}\ns_cbranch_scc1 {sk2}")
                sel = self.o["dbgsel"]
                a.I("v_readlane_b32 s69, v255, 0")
                for i, st in enumerate(sel):
                    a.I(f"v_readlane_b32 s68, v255, {st}\ns_sub_u32 s68, s68, s69\nv_mov_b32 v3, s68\ns_mov_b64 exec, 1")
                    a.I(f"buffer_store_dword v3, off, s[64:67], 0 offset:{8+4*i}\ns_mov_b64 exec, -1")
                a.a.L(sk2)
            a.a.L(skip)
        a.a.L("L_exit")
        a.I("s_endpgm")
        body = a.a.finish()
        hdr = f"""; Fused persistent kernel: conv (MFMA Toeplitz) + 2x (LN, LN, MLP) with in-launch hand-offs
; @launch grid=(256,1,1) block=(256,1,1) lds={LDS_BYTES}
.amdgcn_target "amdgcn-amd-amdhsa--gfx950"
.text
.globl {NAME}
.p2align 8
.type {NAME},@function
{NAME}:
"""
        ftr = f""".section .rodata,"a"
.p2align 6
.amdhsa_kernel {NAME}
  .amdhsa_next_free_vgpr 512
  .amdhsa_next_free_sgpr 102
  .amdhsa_accum_offset 256
  .amdhsa_group_segment_fixed_size 0
  .amdhsa_kernarg_size 112
  .amdhsa_user_sgpr_count 2
  .amdhsa_user_sgpr_kernarg_segment_ptr 1
  .amdhsa_system_sgpr_workgroup_id_x 1
.end_amdhsa_kernel
"""
        return hdr + body + ftr


if __name__ == "__main__":
    import argparse
    ap = argparse.ArgumentParser()
    ap.add_argument("--stop", type=int, default=99)
    ap.add_argument("--prof", action="store_true")
    ap.add_argument("--slow", action="store_true")
    ap.add_argument("--opt", action="append", default=[])
    ap.add_argument("-o", default="k.s")
    args = ap.parse_args()
    opts = {}
    for o in args.opt:
        k, v = o.split("="); opts[k] = int(v)
    if opts.get("dbg"):
        opts["dbgsel"] = [3, 4, 6, 7, 8, 9, 10, 12, 14, 16, 18, 19, 23, 25]
    g = Gen(stop=args.stop, prof=args.prof, force_slow=args.slow, opts=opts)
    txt = g.build()
    open(args.o, "w").write(txt)
    print("lines", txt.count("\n"), "nop insertions", g.a.n_nops)
    if args.prof: open(args.o + ".stamps", "w").write(",".join(g.stamps))
```

```python
import sys, struct
from asmlib import Asm

NAME = "interleave_layers__ssm_conv_h3__mixer_channel_mlp__prompt_kernel"

WS_FLAGS = 0x1000
WS_PROF = 0x8000
WS_KVT = 0x200000
WS_Y = 0x600000
WS_O = 0xA00000
WS_Z1 = 0xE00000
WS_Z3 = 0x1000000
WS_X3 = 0x1200000
WS_H1 = 0x1400000
WS_H3 = 0x1C00000
WS_KVB = 0x2400000
WS_SIZE = 0x2800000
HOP_REG, HOP_C1, HOP_D1, HOP_C2, HOP_D2 = range(5)

L_W1 = 0
L_CR = 114688
CS = 4160
L_TOEP = L_CR
L_UPL = L_CR + 2 * 4 * CS
PS = 1536
L_DUMMY = L_UPL + 2 * 4 * PS
L_XCH = L_CR
L_SCR = L_CR
L_YT = L_CR + 40960
L_P0T = 0
L_CT = L_CR + 32768
LDS_BYTES = 163840

sX, sR, sW = "s4", "s5", "s6"
SRD_Q, SRD_K, SRD_V, SRD_H = "s[8:11]", "s[12:15]", "s[16:19]", "s[20:23]"
SRD_W1, SRD_W2, SRD_WS, SRD_OUT = "s[24:27]", "s[28:31]", "s[32:35]", "s[36:39]"
SRD_SK, SRD_B1, SRD_B2 = "s[40:43]", "s[44:47]", "s[48:51]"
SRD_DBG = "s[80:83]"
sOB = "s84"
sPUREA = "s85"
sSLOT = "s52"
sD0 = "s53"
sZB = "s54"
sC4096 = "s55"
sSPIN = "s56"
sT0, sT1, sT2, sT3, sT4, sT5 = "s57", "s58", "s59", "s60", "s61", "s62"
sMASKLO = "s63"
sM0, sM1, sM2, sM3 = "s[64:65]", "s[66:67]", "s[68:69]", "s[70:71]"
sHB = "s72"
sMASKHI = "s92"
sRH, sCC, sRQ, sNT = "s93", "s94", "s95", "s96"
sEPS = "s97"
sT, sTH, sTAG = "s98", "s99", "s[98:99]"
sPURE = "s100"
sXCC = "s101"

vTID, vLANE = "v0", "v1"


def f32bits(x):
    return "0x%08x" % struct.unpack("<I", struct.pack("<f", x))[0]


class Gen:
    def __init__(self, stop=99, prof=False, force_slow=False, opts=None):
        self.a = Asm()
        self.stop = stop
        self.prof = prof
        self.nlabel = 0
        self.nstamp = 0
        self.force_slow = force_slow
        self.o = opts or {}

    def lab(self, base):
        self.nlabel += 1
        return f"L_{base}_{self.nlabel}"

    def I(self, s): self.a.I(s)
    def C(self, s): self.a.C(s)

    def stamp(self, name):
        if not self.prof: return
        i = self.nstamp; self.nstamp += 1
        self.C(f"stamp {i}: {name}")
        self.I(f"s_memtime s[0:1]\ns_waitcnt lgkmcnt(0)\nv_writelane_b32 v255, s0, {i}")
        self.stamps.append(name)

    def hstore(self, instrs, local=True, flag=None):
        a = self
        if not local:
            for i in instrs: a.I(i + " sc1")
            return
        lp = a.lab("stp"); ld = a.lab("std")
        a.I(f"s_cmp_eq_u32 {flag or sPURE}, 1\ns_cbranch_scc1 {lp}")
        for i in instrs: a.I(i + " sc1")
        a.I(f"s_branch {ld}")
        a.a.L(lp)
        for i in instrs: a.I(i)
        a.a.L(ld)

    def signal(self, hop):
        a = self
        skip = a.lab("sig")
        a.I("s_waitcnt vmcnt(0) lgkmcnt(0)\ns_barrier")
        a.I(f"s_cmp_lg_u32 {sW}, 0\ns_cbranch_scc1 {skip}")
        a.I(f"s_lshl_b32 {sT0}, {sSLOT}, 2\ns_add_u32 {sT0}, {sT0}, {WS_FLAGS + hop * 0x400}")
        a.I(f"v_mov_b32 v2, {sT}")
        a.I("s_mov_b64 exec, 1")
        self.hstore([f"buffer_store_dword v2, off, {SRD_WS}, {sT0}"])
        a.I("s_mov_b64 exec, -1")
        a.a.L(skip)

    def poll(self, hop, first_slot_sgpr, n, purity=False):
        a = self
        loop = a.lab("poll"); done = a.lab("polld")
        a.I(f"s_lshl_b32 {sT0}, {first_slot_sgpr}, 2\ns_add_u32 {sT0}, {sT0}, {WS_FLAGS + hop * 0x400}")
        a.I(f"v_min_u32 v2, {n - 1}, {vLANE}\nv_lshlrev_b32 v2, 2, v2")
        a.I(f"s_mov_b32 {sSPIN}, 0x40000")
        a.a.L(loop)
        a.I(f"buffer_load_dword v3, v2, {SRD_WS}, {sT0} offen sc1")
        a.I("s_waitcnt vmcnt(0)")
        if purity:
            a.I(f"v_and_b32 v4, -16, v3\nv_cmp_ne_u32 vcc, {sT}, v4")
        else:
            a.I(f"v_cmp_ne_u32 vcc, {sT}, v3")
        a.I(f"s_cbranch_vccz {done}")
        a.I(f"s_sub_u32 {sSPIN}, {sSPIN}, 1\ns_cbranch_scc1 {done}")
        a.I("s_sleep 1")
        a.I(f"s_branch {loop}")
        a.a.L(done)
        if purity:
            a.I(f"v_and_b32 v4, 15, v3\nv_cmp_ne_u32 vcc, {sXCC}, v4")
            a.I(f"s_cmp_eq_u64 vcc, 0\ns_cselect_b32 {sPURE}, 1, 0")
            if self.force_slow:
                a.I(f"s_mov_b32 {sPURE}, 0")

    def tagpoll(self, vaddr, soff, offs, dst, sleep=2, limit=0x20000, ok_label=None):
        a = self
        loop = a.lab("tp"); done = ok_label or a.lab("tpd"); out = a.lab("tpo")
        so = soff if isinstance(soff, (list, tuple)) else [soff] * 4
        a.I(f"s_mov_b32 {sSPIN}, {limit}")
        a.a.L(loop)
        for j in range(4):
            a.I(f"buffer_load_dwordx4 v[{dst+4*j}:{dst+4*j+3}], {vaddr}, {SRD_WS}, {so[j]} offen offset:{offs[j]} sc1")
        a.I("s_waitcnt vmcnt(0)")
        ms = (sM0, sM1, sM2, sM3)
        for j in range(4):
            a.I(f"v_cmp_ne_u64 {ms[j]}, {sTAG}, v[{dst+4*j+2}:{dst+4*j+3}]")
        a.I(f"s_or_b64 {sM0}, {sM0}, {sM1}\ns_or_b64 {sM2}, {sM2}, {sM3}\ns_or_b64 {sM0}, {sM0}, {sM2}")
        a.I(f"s_cbranch_scc0 {done}")
        a.I(f"s_sub_u32 {sSPIN}, {sSPIN}, 1\ns_cbranch_scc1 {out}")
        a.I(f"s_sleep {sleep}")
        a.I(f"s_branch {loop}")
        a.a.L(out)
        if ok_label is None:
            a.a.L(done)

    def ctag_store(self, src, lds_base_sgpr_setup, vaddr, soffs, local, vtmp=8, wr_addr=None, flag=None):
        a = self
        a.I(lds_base_sgpr_setup)
        if wr_addr is None:
            a.I(f"v_lshlrev_b32 v6, 5, {vLANE}\nv_add_u32 v6, {sT5}, v6")
            a.I(f"ds_write_b128 v6, v[{src}:{src+3}]\nds_write_b128 v6, v[{src+4}:{src+7}] offset:16")
        else:
            wr_addr()
        a.I(f"v_lshlrev_b32 v7, 3, {vLANE}\nv_add_u32 v7, {sT5}, v7")
        for j in range(4):
            a.I(f"ds_read_b64 v[{vtmp+4*j}:{vtmp+4*j+1}], v7 offset:{512*j}")
        a.I("s_waitcnt lgkmcnt(0)")
        st = [f"buffer_store_dwordx4 v[{vtmp+4*j}:{vtmp+4*j+3}], {vaddr}, {SRD_WS}, {soffs[j][0]} offen offset:{soffs[j][1]}" for j in range(4)]
        if local == "none":
            pass
        elif local == "plain":
            for x in st: a.I(x)
        else:
            self.hstore(st, local, flag)

    def maybe_stop(self, k):
        if self.stop == k:
            self.I("s_branch L_end")

    def prologue(self):
        a = self
        a.I("s_cmp_ge_u32 s2, 256\ns_cbranch_scc1 L_exit")
        if self.o.get("codepf", 1):
            a.I("s_getpc_b64 s[92:93]")
            a.a.L("L_pc")
            a.I("s_lshr_b32 s3, s2, 3\ns_lshl_b32 s3, s3, 11\nv_and_b32 v2, 15, v0\nv_lshlrev_b32 v2, 7, v2\nv_add_u32 v2, s3, v2")
            a.I("v_min_u32 v2, L_codeend-L_pc-4, v2\nv_and_b32 v2, -4, v2")
            a.I("global_load_dword v254, v2, s[92:93]")
        a.I("s_load_dwordx16 s[64:79], s[0:1], 0\ns_load_dwordx8 s[80:87], s[0:1], 64\ns_load_dwordx4 s[88:91], s[0:1], 96")
        if self.prof:
            a.I("v_mov_b32 v255, 0")
            a.I("s_memrealtime s[0:1]\ns_waitcnt lgkmcnt(0)\nv_writelane_b32 v255, s0, 63")
            a.stamp("start")
        a.I(f"s_and_b32 {sX}, s2, 7\ns_lshr_b32 {sR}, s2, 3")
        a.I(f"v_lshrrev_b32 v2, 6, v0\nv_and_b32 {vLANE}, 63, v0")
        a.I(f"v_readfirstlane_b32 {sW}, v2")
        a.I(f"s_lshl_b32 {sSLOT}, {sX}, 5\ns_add_u32 {sSLOT}, {sSLOT}, {sR}")
        a.I(f"s_mov_b32 {sC4096}, 4096\ns_mov_b32 {sMASKLO}, 0xffff\ns_mov_b32 {sMASKHI}, 0xffff0000")
        a.I(f"s_mov_b32 {sEPS}, {f32bits(1e-5)}")
        a.I(f"s_lshr_b32 {sRH}, {sR}, 4\ns_and_b32 {sCC}, {sR}, 15")
        a.I(f"s_lshr_b32 {sRQ}, {sR}, 3\ns_and_b32 {sNT}, {sR}, 7")
        a.I(f"s_getreg_b32 {sXCC}, hwreg(HW_REG_XCC_ID)\ns_and_b32 {sXCC}, {sXCC}, 15\ns_mov_b32 {sPURE}, 0")
        a.I("s_waitcnt lgkmcnt(0)")
        a.stamp("kernarg")

        def srd(n, lo, size):
            b = int(n[2:n.index(":")])
            a.I(f"s_mov_b32 s{b}, s{lo}\ns_mov_b32 s{b+1}, s{lo+1}\ns_mov_b32 s{b+2}, {size}\ns_mov_b32 s{b+3}, 0x20000")
        srd(SRD_K, 66, 2097152); srd(SRD_V, 68, 2097152); srd(SRD_SK, 70, 4096)
        if not self.o.get("diag"):
            a.I(f"s_load_dword {sT}, s[90:91], 0")
            a.I(f"s_lshl_b32 {sT0}, {sX}, 7\ns_lshl_b32 {sT1}, {sR}, 2\ns_add_u32 {sT0}, {sT0}, {sT1}")
            a.I(f"s_load_dword {sD0}, s[74:75], {sT0}")
        self.kv_loads()
        if self.o.get("diag"): a.stamp("kv issued")
        srd(SRD_H, 72, 2097152); srd(SRD_Q, 64, 2097152); srd(SRD_WS, 90, WS_SIZE)
        srd(SRD_W1, 78, 512 * 1792 * 2); srd(SRD_B1, 80, 1792 * 2); srd(SRD_W2, 82, 1792 * 512 * 2)
        srd(SRD_B2, 84, 1024); srd(SRD_OUT, 86, 2097152)
        if self.o.get("apath", 0):
            a.I(f"v_min_u32 v37, 127, {vTID}\nv_lshlrev_b32 v37, 7, v37\ns_lshl_b32 {sT0}, {sSLOT}, 14\ns_add_u32 {sT0}, {sT0}, {WS_KVT}")
            a.I(f"buffer_load_dword v38, v37, {SRD_WS}, {sT0} offen")

    def kv_loads(self):
        a = self
        a.I(f"v_and_b32 v2, 31, {vTID}\nv_lshrrev_b32 v3, 5, {vTID}")
        a.I(f"s_lshl_b32 {sT0}, {sR}, 16\ns_lshl_b32 {sT1}, {sX}, 7\ns_add_u32 {sT0}, {sT0}, {sT1}")
        a.I(f"v_lshlrev_b32 v4, 13, v3\nv_lshl_add_u32 v4, v2, 2, v4\nv_add_u32 v4, {sT0}, v4")
        a.I("v_subrev_u32 v5, 3072, v4")
        a.I("v_cmp_gt_u32 vcc, 1024, v4")
        a.I("v_mov_b32 v6, 0x40000000")
        a.I("v_cndmask_b32 v5, v5, v6, vcc")
        for j in range(3):
            a.I(f"buffer_load_dword v{8+j}, v5, {SRD_K}, 0 offen offset:{j*1024}")
        for j in range(8):
            so = "0" if j < 4 else sC4096
            a.I(f"buffer_load_dword v{11+j}, v4, {SRD_K}, {so} offen offset:{(j%4)*1024}")
        for j in range(8):
            so = "0" if j < 4 else sC4096
            a.I(f"buffer_load_dword v{20+j}, v4, {SRD_V}, {so} offen offset:{(j%4)*1024}")
        a.I(f"s_lshl_b32 {sT0}, {sX}, 9\nv_lshlrev_b32 v6, 4, v2")
        a.I(f"buffer_load_dwordx4 v[28:31], v6, {SRD_SK}, {sT0} offen")

    def other_loads(self):
        a = self
        a.I(f"v_lshlrev_b32 v6, 4, {vTID}\nv_sub_u32 v7, 4080, v6\nv_sub_u32 v6, 4064, v6")
        a.I(f"v_cmp_eq_u32 vcc, 255, {vTID}\nv_mov_b32 v32, 0x40000000\nv_cndmask_b32 v6, v6, v32, vcc")
        a.I(f"s_lshl_b32 {sT0}, {sX}, 18\ns_lshl_b32 {sT1}, {sR}, 13\ns_add_u32 {sT0}, {sT0}, {sT1}\ns_add_u32 {sT1}, {sT0}, 4096")
        a.I(f"buffer_load_dwordx4 v[40:43], v6, {SRD_H}, {sT0} offen")
        a.I(f"buffer_load_dwordx4 v[44:47], v7, {SRD_H}, {sT0} offen")
        a.I(f"buffer_load_dwordx4 v[48:51], v6, {SRD_H}, {sT1} offen")
        a.I(f"buffer_load_dwordx4 v[52:55], v7, {SRD_H}, {sT1} offen")
        n = 0
        if self.o.get("w2touch", 0):
            a.I(f"v_lshlrev_b32 v37, 7, {vTID}\ns_mul_i32 {sT0}, {sR}, 57344")
            a.I(f"buffer_load_dword v39, v37, {SRD_W2}, {sT0} offen"); n += 1
            a.I(f"v_min_u32 v37, 191, {vTID}\nv_lshlrev_b32 v37, 7, v37\ns_add_u32 {sT0}, {sT0}, 32768")
            a.I(f"buffer_load_dword v39, v37, {SRD_W2}, {sT0} offen"); n += 1
        self.nearly = n

    def w1_dma_setup(self):
        a = self
        a.I(f"s_mov_b32 {sT0}, 4682")
        for i in range(7):
            a.I(f"v_add_u32 v34, {64*i}, {vLANE}\nv_mul_u32_u24 v35, {sT0}, v34\nv_lshrrev_b32 v35, 16, v35")
            a.I(f"v_mul_u32_u24 v36, 14, v35\nv_sub_u32 v36, v34, v36")
            a.I(f"v_mul_u32_u24 v35, 3584, v35\nv_lshl_add_u32 v{148+i}, v36, 4, v35")
        a.I(f"s_mul_i32 s73, {sW}, {128*3584}\ns_mul_i32 {sT2}, {sCC}, 224\ns_add_u32 s73, s73, {sT2}")
        a.I(f"s_mul_i32 s74, {sW}, 28672")

    def w1_dma_list(self):
        out = []
        for g in range(4):
            for i in range(7):
                x = f"s_add_u32 m0, s74, {L_W1 + g*7168 + i*1024}\n"
                if g > 0 and i == 0:
                    x = f"s_add_u32 s73, s73, {32*3584}\n" + x
                out.append(x + f"buffer_load_dwordx4 v{148+i}, {SRD_W1}, s73 offen lds")
        return out

    def q_loads(self):
        a = self
        self.rowaddr("v33", "v34")
        a.I(f"s_lshl_b32 {sT0}, {sSLOT}, 13")
        for i, off in enumerate((0, 32, 64, 96)):
            a.I(f"buffer_load_dwordx2 a[{224+2*i}:{225+2*i}], v33, {SRD_Q}, {sT0} offen offset:{off}")

    def rowaddr(self, vd, vt):
        a = self
        a.I(f"v_lshrrev_b32 {vd}, 5, {vTID}\nv_lshlrev_b32 {vd}, 10, {vd}")
        a.I(f"v_bfe_u32 {vt}, {vTID}, 2, 3\nv_lshl_add_u32 {vd}, {vt}, 7, {vd}")
        a.I(f"v_and_b32 {vt}, 3, {vTID}\nv_lshl_add_u32 {vd}, {vt}, 3, {vd}")

    def tags_into(self, quads):
        for q in quads:
            self.I(f"v_mov_b32 v{q+2}, {sT}\nv_mov_b32 v{q+3}, {sTH}")

    def p0_compute(self, younger):
        a = self
        self.tags_into((104, 108, 112, 116))
        a.stamp("epoch")
        a.I(f"s_waitcnt vmcnt({younger})")
        a.stamp("kv arrived")
        for c in range(2):
            for h in range(2):
                src = 28 + 2 * c + h
                a.I(f"v_lshlrev_b32 v{56+4*c+2*h}, 16, v{src}\nv_and_b32 v{57+4*c+2*h}, {sMASKHI}, v{src}")
        for j in range(11):
            a.I(f"v_lshlrev_b32 v{64+j}, 16, v{8+j}\nv_and_b32 v{76+j}, {sMASKHI}, v{8+j}")
        for c in range(2):
            kb = 64 + 12 * c
            wb = 56 + 4 * c
            for j in range(8):
                a.I(f"v_mul_f32 v{88+8*c+j}, v{kb+j+3}, v{wb}")
            for i in range(1, 4):
                for j in range(8):
                    a.I(f"v_fmac_f32 v{88+8*c+j}, v{kb+j+3-i}, v{wb+i}")
        for j in range(8):
            a.I(f"v_lshlrev_b32 v{64+j}, 16, v{20+j}\nv_and_b32 v{76+j}, {sMASKHI}, v{20+j}")
        for c in range(2):
            for j in range(8):
                a.I(f"v_mul_f32 v{88+8*c+j}, v{88+8*c+j}, v{64+12*c+j}")
        for c in range(2):
            for j in range(4):
                a.I(f"v_cvt_pk_bf16_f32 v{64+4*c+j}, v{88+8*c+2*j}, v{88+8*c+2*j+1}")
        a.I(f"v_lshrrev_b32 v4, 2, {vLANE}\nv_lshlrev_b32 v4, 14, v4\nv_and_b32 v5, 3, {vLANE}\nv_lshl_add_u32 v4, v5, 4, v4")
        a.I(f"s_lshl_b32 {sT0}, {sX}, 19\ns_lshl_b32 {sT1}, {sR}, 9\ns_add_u32 {sT0}, {sT0}, {sT1}\ns_lshl_b32 {sT1}, {sW}, 7\ns_add_u32 {sT0}, {sT0}, {sT1}")
        a.I(f"s_add_u32 {sT0}, {sT0}, {WS_KVT}\ns_add_u32 {sT1}, {sT0}, {16*16384}")
        self.ctag_store(64, f"s_lshl_b32 {sT5}, {sW}, 11\ns_add_u32 {sT5}, {sT5}, {L_P0T}", "v4",
                        [(sT0, 0), (sT1, 0), (sT0, 64), (sT1, 64)], "plain" if self.o.get("apath", 0) else "none", vtmp=104)
        a.I(f"v_lshlrev_b32 v4, 4, {vLANE}\ns_lshl_b32 {sT0}, {sSLOT}, 14\ns_lshl_b32 {sT1}, {sW}, 12\ns_add_u32 {sT0}, {sT0}, {sT1}\ns_add_u32 {sT0}, {sT0}, {WS_KVB}")
        for j in range(4):
            a.I(f"buffer_store_dwordx4 v[{104+4*j}:{107+4*j}], v4, {SRD_WS}, {sT0} offen offset:{1024*j} sc1")

    def toeplitz_build(self):
        a = self
        a.I("v_mov_b32 v56, 0\nv_mov_b32 v57, 0\nv_mov_b32 v58, 0\nv_mov_b32 v59, 0")
        a.I(f"v_lshrrev_b32 v2, 5, {vTID}\nv_mul_u32_u24 v2, {PS}, v2\nv_and_b32 v3, 31, {vTID}\nv_lshl_add_u32 v2, v3, 4, v2\nv_add_u32 v2, {L_UPL}, v2")
        a.I(f"ds_write_b128 v2, v[56:59]")
        a.I(f"v_bfe_u32 v2, {vLANE}, 2, 3\nv_mul_u32_u24 v2, {CS}, v2\nv_and_b32 v3, 3, {vLANE}\nv_lshl_add_u32 v2, v3, 4, v2\nv_add_u32 v2, {L_TOEP+4096}, v2")
        a.I(f"ds_write_b128 v2, v[56:59]")
        a.I(f"v_lshlrev_b32 v2, 4, {vTID}\nv_add_u32 v2, {L_TOEP}, v2")
        for c in range(2):
            W = lambda k: f"v{40+8*c+k}"
            b0 = 60 + 20 * c
            for i in range(4): a.I(f"v_alignbit_b32 v{b0+i}, {W(7-i)}, {W(7-i)}, 16")
            for i in range(4): a.I(f"v_alignbit_b32 v{b0+4+i}, {W(6-i)}, {W(6-i)}, 16")
            for i in range(4): a.I(f"v_bfi_b32 v{b0+8+i}, {sMASKLO}, {W(7-i)}, {W(6-i)}")
            for i in range(4): a.I(f"v_bfi_b32 v{b0+12+i}, {sMASKLO}, {W(6-i)}, {W(5-i)}")
            for q, base in ((0, b0), (2, b0 + 4), (1, b0 + 8), (3, b0 + 12)):
                a.I(f"ds_write_b128 v2, v[{base}:{base+3}] offset:{(c * 4 + q) * CS}")

    def hop_a(self):
        a = self
        a.I(f"v_lshlrev_b32 v2, 4, {vLANE}\ns_lshl_b32 {sT0}, {sSLOT}, 14\ns_add_u32 {sT0}, {sT0}, {WS_KVT}\ns_lshl_b32 {sT1}, {sW}, 12\ns_add_u32 {sT0}, {sT0}, {sT1}")
        a.I(f"v_bfe_u32 v3, {vLANE}, 1, 1\nv_mul_u32_u24 v3, {4*PS}, v3\nv_bfe_u32 v4, {vLANE}, 2, 2\nv_mul_u32_u24 v4, {PS}, v4\nv_add_u32 v3, v3, v4")
        a.I(f"v_lshrrev_b32 v4, 4, {vLANE}\nv_lshl_add_u32 v3, v4, 4, v3\nv_and_b32 v4, 1, {vLANE}\nv_lshl_add_u32 v3, v4, 3, v3")
        a.I(f"s_lshl_b32 {sT1}, {sW}, 8\ns_add_u32 {sT1}, {sT1}, {L_UPL+512}\nv_add_u32 v3, {sT1}, v3")
        ok = a.lab("hopa_ok")
        lim = 0 if self.force_slow else self.o.get("a_limit", 48)
        if not self.force_slow and self.o.get("apath", 0):
            self.tagpoll("v2", sT0, (0, 1024, 2048, 3072), 8, sleep=1, limit=lim, ok_label=ok)
        a.I(f"v_lshrrev_b32 v2, 5, {vLANE}\nv_lshlrev_b32 v2, 14, v2\nv_bfe_u32 v4, {vLANE}, 2, 3\nv_lshl_add_u32 v2, v4, 11, v2\nv_and_b32 v4, 3, {vLANE}\nv_lshl_add_u32 v2, v4, 4, v2")
        a.I(f"s_lshl_b32 {sT0}, {sX}, 19\ns_lshl_b32 {sT1}, {sW}, 17\ns_add_u32 {sT0}, {sT0}, {sT1}\ns_lshl_b32 {sT1}, {sR}, 6\ns_add_u32 {sT0}, {sT0}, {sT1}\ns_add_u32 {sT0}, {sT0}, {WS_KVB}")
        a.I(f"s_add_u32 {sT1}, {sT0}, 32768\ns_add_u32 {sT2}, {sT0}, 65536\ns_add_u32 {sT3}, {sT0}, 98304")
        self.tagpoll("v2", [sT0, sT1, sT2, sT3], (0, 0, 0, 0), 8, sleep=2)
        a.a.L(ok)
        for j in range(4):
            a.I(f"ds_write_b64 v3, v[{8+4*j}:{9+4*j}] offset:{64*j}")
        a.I("s_waitcnt lgkmcnt(0)\ns_barrier")

    def w2_rows(self, kap_local):
        cp, i = divmod(kap_local, 7)
        base = 224 * cp
        if i < 3: starts = [base + 32 * i + 8 * g for g in range(4)]
        elif i < 6: starts = [base + 112 + 32 * (i - 3) + 8 * g for g in range(4)]
        else: starts = [base + 96, base + 104, base + 208, base + 216]
        return starts

    def w2_setup(self, vreg):
        a = self
        a.I(f"v_lshrrev_b32 {vreg}, 3, {vLANE}\nv_lshlrev_b32 {vreg}, 10, {vreg}\nv_and_b32 v5, 7, {vLANE}\nv_lshl_add_u32 {vreg}, v5, 4, {vreg}")
        a.I(f"s_lshl_b32 {sT2}, {sNT}, 7\nv_add_u32 {vreg}, {sT2}, {vreg}")
        a.I(f"s_mul_i32 {sT3}, {sW}, {448*1024}")

    def w2_load_list(self, vreg, k0=0, k1=14):
        out = []
        for k in range(k0, k1):
            for g, st in enumerate(self.w2_rows(k)):
                d = (k * 4 + g) * 4
                out.append(f"s_add_u32 {sT2}, {sT3}, {st*1024}\nbuffer_load_dwordx4 a[{d}:{d+3}], {vreg}, {SRD_W2}, {sT2} offen")
        return out

    def conv_main(self):
        a = self
        self.q_loads()
        self.w1_dma_setup()
        w2l = self.w1_dma_list()
        if self.o.get("htouch", 0):
            tl = self.touch_setup()
            w2l = w2l + tl[2:]
        a.I(f"s_and_b32 {sT1}, {sW}, 1\ns_lshr_b32 {sT4}, {sW}, 1")
        a.I(f"v_and_b32 v4, 3, {vLANE}\nv_sub_u32 v4, 3, v4\nv_mul_u32_u24 v2, {CS}, v4")
        a.I(f"v_bfe_u32 v4, {vLANE}, 2, 3\nv_lshlrev_b32 v4, 3, v4\nv_sub_u32 v2, v2, v4")
        a.I(f"v_lshrrev_b32 v5, 5, {vLANE}\nv_lshl_add_u32 v2, v5, 4, v2")
        a.I(f"s_mul_i32 {sT0}, {sT1}, {4*CS}\ns_lshl_b32 {sT5}, {sT4}, 10\ns_sub_u32 {sT0}, {sT0}, {sT5}\ns_add_u32 {sT0}, {sT0}, {L_TOEP+1080}")
        a.I(f"v_add_u32 v2, {sT0}, v2")
        a.I(f"v_mul_u32_u24 v3, {PS}, v5\nv_and_b32 v4, 31, {vLANE}\nv_lshl_add_u32 v3, v4, 4, v3")
        a.I(f"s_mul_i32 {sT0}, {sT1}, {4*PS}\ns_lshl_b32 {sT5}, {sT4}, 8\ns_sub_u32 {sT0}, {sT0}, {sT5}\ns_add_u32 {sT0}, {sT0}, {L_UPL+17*16}")
        a.I(f"v_add_u32 v3, {sT0}, v3")
        for i in range(64, 96):
            a.I(f"v_mov_b32 v{i}, 0")

        def reads(tp):
            b = 96 + 16 * (tp % 3)
            boff = (15 - (tp - 1) // 2) * 16 if tp % 2 == 1 else 2 * PS + (15 - tp // 2) * 16
            a.I(f"ds_read_b64 v[{b}:{b+1}], v2 offset:{3040-32*tp}")
            a.I(f"ds_read_b64 v[{b+2}:{b+3}], v2 offset:{3048-32*tp}")
            a.I(f"ds_read_b128 v[{b+4}:{b+7}], v3 offset:{boff+512}")
            a.I(f"ds_read_b128 v[{b+8}:{b+11}], v3 offset:{boff}")
            a.I(f"ds_read_b64 v[{b+12}:{b+13}], v2 offset:{992-32*tp}")
            a.I(f"ds_read_b64 v[{b+14}:{b+15}], v2 offset:{1000-32*tp}")
        reads(0); reads(1)
        per = self.o.get("w2_per_step", 1)
        for tp in range(32):
            a.I("s_waitcnt lgkmcnt(6)" if tp + 1 < 32 else "s_waitcnt lgkmcnt(0)")
            b = 96 + 16 * (tp % 3)
            a.I(f"v_mfma_f32_32x32x16_bf16 v[80:95], v[{b}:{b+3}], v[{b+4}:{b+7}], v[80:95]")
            if tp + 2 < 32: reads(tp + 2)
            if w2l and per >= 1: a.I(w2l.pop(0))
            a.I(f"v_mfma_f32_32x32x16_bf16 v[64:79], v[{b}:{b+3}], v[{b+8}:{b+11}], v[64:79]")
            if w2l and per >= 2: a.I(w2l.pop(0))
            a.I(f"v_mfma_f32_32x32x16_bf16 v[80:95], v[{b+12}:{b+15}], v[{b+8}:{b+11}], v[80:95]")
        for x in w2l: a.I(x)

    def conv_epilogue(self):
        a = self
        self.tags_into((144, 148, 152, 156))
        a.I("s_barrier")
        a.I(f"s_lshl_b32 {sT0}, {sW}, 13\ns_add_u32 {sT0}, {sT0}, {L_XCH}\nv_lshlrev_b32 v2, 4, {vLANE}\nv_add_u32 v3, {sT0}, v2")
        for dst in range(4):
            part, rh = dst >> 1, dst & 1
            b = 64 + 16 * part + 8 * rh
            for h in range(2):
                a.I(f"ds_write_b128 v3, v[{b+4*h}:{b+4*h+3}] offset:{dst*2048 + h*1024}")
        a.I(f"s_and_b32 {sT1}, {sW}, 1\ns_lshr_b32 {sT2}, {sW}, 1")
        a.I(f"v_and_b32 v4, 31, {vLANE}\nv_lshlrev_b32 v4, 4, v4\nv_lshrrev_b32 v5, 5, {vLANE}\nv_lshl_add_u32 v4, v5, 3, v4")
        a.I(f"s_mul_i32 {sT3}, {sT1}, {2*PS}\ns_lshl_b32 {sT4}, {sT2}, 9\ns_add_u32 {sT3}, {sT3}, {sT4}\ns_add_u32 {sT3}, {sT3}, {L_UPL+512}")
        a.I(f"v_add_u32 v4, {sT3}, v4")
        for c in range(2):
            for g in range(2):
                d = 96 + 4 * c + 2 * g
                a.I(f"ds_read_b64 v[{d}:{d+1}], v4 offset:{c*4*PS + g*PS}")
        a.I("s_waitcnt lgkmcnt(0)\ns_barrier")
        a.I(f"s_lshl_b32 {sT0}, {sW}, 11\ns_add_u32 {sT0}, {sT0}, {L_XCH}\nv_add_u32 v3, {sT0}, v2")
        for src in range(4):
            for h in range(2):
                d = 104 + 8 * src + 4 * h
                a.I(f"ds_read_b128 v[{d}:{d+3}], v3 offset:{src*8192 + h*1024}")
        a.I(f"s_lshl_b32 {sT4}, {sD0}, 16\ns_and_b32 {sT5}, {sD0}, {sMASKHI}")
        for c in range(2):
            for g in range(2):
                for h in range(2):
                    s = 96 + 4 * c + 2 * g + h
                    d = 64 + 8 * c + 4 * g + 2 * h
                    a.I(f"v_lshlrev_b32 v{d}, 16, v{s}\nv_and_b32 v{d+1}, {sMASKHI}, v{s}")
        a.I("s_waitcnt lgkmcnt(0)")
        for c in range(2):
            sd = sT4 if c == 0 else sT5
            for e in range(8):
                a.I(f"v_add_f32 v{104+8*c+e}, v{104+8*c+e}, v{104+8*(c+2)+e}")
            for e in range(8):
                a.I(f"v_fmac_f32 v{104+8*c+e}, {sd}, v{64+8*c+e}")
        for e in range(8):
            a.I(f"v_cvt_pk_bf16_f32 v{80+e}, v{104+e}, v{112+e}")
        a.I(f"v_lshrrev_b32 v4, 2, {vLANE}\nv_lshlrev_b32 v4, 16, v4\nv_and_b32 v8, 3, {vLANE}\nv_lshl_add_u32 v4, v8, 4, v4")
        a.I(f"s_lshl_b32 {sT3}, {sT2}, 21\ns_lshl_b32 {sT0}, {sT1}, 15\ns_add_u32 {sT3}, {sT3}, {sT0}")
        a.I(f"s_lshl_b32 {sT0}, {sSLOT}, 6\ns_add_u32 {sT3}, {sT3}, {sT0}\ns_add_u32 {sT0}, {sT3}, {WS_Y}")
        a.I(f"s_add_u32 {sT1}, {sT0}, {16*65536}\ns_add_u32 {sT2}, {sT0}, 16384\ns_add_u32 {sT3}, {sT1}, 16384")

        def wr():
            a.I(f"v_and_b32 v6, 31, {vLANE}\nv_lshlrev_b32 v6, 5, v6\nv_lshl_add_u32 v6, v5, 4, v6\nv_add_u32 v6, {sT5}, v6")
            a.I(f"ds_write_b128 v6, v[80:83]\nds_write_b128 v6, v[84:87] offset:1024")
        self.ctag_store(80, f"s_lshl_b32 {sT5}, {sW}, 11\ns_add_u32 {sT5}, {sT5}, {L_CT}", "v4",
                        [(sT0, 0), (sT1, 0), (sT2, 0), (sT3, 0)], False, vtmp=144, wr_addr=wr)
        a.I("s_barrier")

    def touch_setup(self):
        a = self
        a.I(f"s_lshl_b32 {sT0}, {sX}, 4\ns_lshl_b32 {sT1}, {sRH}, 3\ns_add_u32 {sT0}, {sT0}, {sT1}\ns_lshl_b32 {sT1}, {sW}, 1\ns_add_u32 {sT0}, {sT0}, {sT1}")
        a.I(f"s_mul_i32 {sT0}, {sT0}, 57344\ns_add_u32 {sT0}, {sT0}, {WS_H1}")
        a.I(f"s_lshr_b32 {sT1}, {sCC}, 1\ns_mul_i32 {sT1}, {sT1}, 7168\ns_add_u32 s75, {sT0}, {sT1}")
        a.I(f"s_and_b32 {sT2}, {sCC}, 1\ns_mul_i32 {sT2}, {sT2}, 3072")
        a.I(f"v_and_b32 v2, 31, {vLANE}\nv_lshlrev_b32 v3, 7, v2\nv_add_u32 v4, {sT2}, v3")
        a.I(f"v_add_u32 v3, {6144-24*128}, v3\nv_cmp_gt_u32 vcc, 24, v2\nv_cndmask_b32 v3, v3, v4, vcc")
        a.I(f"v_lshrrev_b32 v2, 5, {vLANE}\nv_mul_u32_u24 v2, 57344, v2\nv_add_u32 v145, v3, v2")
        a.I(f"v_lshlrev_b32 v146, 7, {vTID}\nv_min_u32 v147, 191, {vTID}\nv_lshlrev_b32 v147, 7, v147")
        a.I(f"s_mul_i32 s76, {sR}, 57344\ns_add_u32 s77, s76, 32768")
        return [f"buffer_load_dword v160, v146, {SRD_W1}, s76 offen",
                f"buffer_load_dword v160, v147, {SRD_W1}, s77 offen",
                f"buffer_load_dword v160, v145, {SRD_WS}, s75 offen"]

    def w2_convert(self, extra, k0=0, k1=14):
        a = self
        a.I(f"v_lshrrev_b32 v2, 3, {vLANE}\nv_mul_u32_u24 v2, 160, v2\nv_and_b32 v3, 7, {vLANE}\nv_lshl_add_u32 v2, v3, 4, v2")
        a.I(f"s_mul_i32 {sT0}, {sW}, 10240\ns_add_u32 {sT0}, {sT0}, {L_SCR}\nv_add_u32 v2, {sT0}, v2")
        a.I(f"v_lshrrev_b32 v3, 2, {vLANE}\nv_mul_u32_u24 v3, 160, v3\nv_and_b32 v4, 3, {vLANE}\nv_lshl_add_u32 v3, v4, 3, v3\nv_add_u32 v3, {sT0}, v3")
        for k in range(k0, k1):
            buf = (k % 2) * 5120
            for g in range(4):
                d = (k * 4 + g) * 4
                a.I(f"ds_write_b128 v2, a[{d}:{d+3}] offset:{buf + g*1280}")
                if extra and g % 2 == 1: a.I(extra.pop(0))
            for aa in range(4):
                for hh in range(2):
                    ar = (k * 4 + aa) * 4 + 2 * hh
                    a.I(f"ds_read_b64_tr_b16 a[{ar}:{ar+1}], v3 offset:{buf + hh*16*160 + aa*32}")
        for x in extra: a.I(x)
        a.I("s_waitcnt lgkmcnt(0)")

    def allreduce32(self, ra, rb, tmp1, tmp2):
        a = self
        for sh in (8, 4, 2, 1):
            a.I(f"v_add_f32_dpp {ra}, {ra}, {ra} row_ror:{sh} row_mask:0xf bank_mask:0xf")
            a.I(f"v_add_f32_dpp {rb}, {rb}, {rb} row_ror:{sh} row_mask:0xf bank_mask:0xf")
        a.I(f"v_mov_b32 {tmp1}, {ra}\nv_mov_b32 {tmp2}, {rb}")
        a.I(f"v_permlane16_swap_b32 {ra}, {tmp1}\nv_permlane16_swap_b32 {rb}, {tmp2}")
        a.I(f"v_add_f32 {ra}, {ra}, {tmp1}\nv_add_f32 {rb}, {rb}, {tmp2}")

    def stats(self, xb, vs, vq):
        a = self
        a.I(f"v_add_f32 {vs}, v{xb}, v{xb+1}\nv_mul_f32 {vq}, v{xb}, v{xb}\nv_add_f32 v6, v{xb+2}, v{xb+3}\nv_mul_f32 v7, v{xb+2}, v{xb+2}")
        a.I(f"v_fmac_f32 {vq}, v{xb+1}, v{xb+1}\nv_fmac_f32 v7, v{xb+3}, v{xb+3}")
        for e in range(4, 16, 2):
            a.I(f"v_add_f32 {vs}, {vs}, v{xb+e}\nv_fmac_f32 {vq}, v{xb+e}, v{xb+e}\nv_add_f32 v6, v6, v{xb+e+1}\nv_fmac_f32 v7, v{xb+e+1}, v{xb+e+1}")
        a.I(f"v_add_f32 {vs}, {vs}, v6\nv_add_f32 {vq}, {vq}, v7")
        self.allreduce32(vs, vq, "v6", "v7")
        a.I(f"v_mul_f32 {vs}, {f32bits(1/512)}, {vs}\nv_mul_f32 {vq}, {f32bits(1/512)}, {vq}")
        a.I(f"v_fma_f32 {vq}, -{vs}, {vs}, {vq}\nv_max_f32 {vq}, 0, {vq}")

    def r_core(self, x3store):
        a = self
        self.stats(16, "v4", "v5")
        a.I(f"v_add_f32 v5, {sEPS}, v5\nv_rsq_f32 v5, v5")
        for e in range(16):
            a.I(f"v_sub_f32 v{48+e}, v{16+e}, v4")
        for e in range(16):
            a.I(f"v_mul_f32 v{48+e}, v{48+e}, v5")
        for e in range(16):
            a.I(f"v_fmac_f32 v{16+e}, v{48+e}, v{32+e}")
        for j in range(8):
            a.I(f"v_cvt_pk_bf16_f32 v{48+j}, v{16+2*j}, v{16+2*j+1}")
        for j in range(8):
            a.I(f"v_lshlrev_b32 v{16+2*j}, 16, v{48+j}\nv_and_b32 v{16+2*j+1}, {sMASKHI}, v{48+j}")
        if x3store:
            a.I(f"v_lshrrev_b32 v8, 5, {vTID}\nv_lshlrev_b32 v8, 10, v8\nv_bfe_u32 v9, {vTID}, 2, 3\nv_lshl_add_u32 v8, v9, 7, v8\nv_and_b32 v9, 3, {vTID}\nv_lshl_add_u32 v8, v9, 4, v8")
            a.I(f"s_lshl_b32 {sT0}, {sSLOT}, 13\ns_add_u32 {sT0}, {sT0}, {WS_X3}")
            self.hstore([f"buffer_store_dwordx4 v[48:51], v8, {SRD_WS}, {sT0} offen",
                         f"buffer_store_dwordx4 v[52:55], v8, {SRD_WS}, {sT0} offen offset:64"])
        else:
            for j in range(8):
                a.I(f"v_accvgpr_write_b32 a{224+j}, v{48+j}")
        self.stats(16, "v4", "v5")
        a.I(f"v_add_f32 v6, {sEPS}, v5\nv_rsq_f32 v7, v6\nv_rcp_f32 v6, v6")
        a.I(f"v_mul_f32 v6, v5, v6\nv_add_f32 v6, {sEPS}, v6\nv_rsq_f32 v6, v6\nv_mul_f32 v5, v7, v6")
        for e in range(16):
            a.I(f"v_sub_f32 v{16+e}, v{16+e}, v4")
        for e in range(16):
            a.I(f"v_mul_f32 v{16+e}, v{16+e}, v5")
        for j in range(8):
            a.I(f"v_cvt_pk_bf16_f32 v{56+j}, v{16+2*j}, v{16+2*j+1}")
        a.I(f"v_bfe_u32 v8, {vTID}, 2, 3\nv_lshlrev_b32 v8, 11, v8\nv_and_b32 v9, 3, {vTID}\nv_lshl_add_u32 v8, v9, 8, v8")
        a.I(f"v_lshrrev_b32 v9, 5, {vTID}\nv_lshl_add_u32 v8, v9, 4, v8")
        a.I(f"s_lshr_b32 {sT0}, {sR}, 1\ns_lshl_b32 {sT0}, {sT0}, 14")
        a.I(f"s_and_b32 {sT1}, {sR}, 1\ns_lshl_b32 {sT1}, {sT1}, 7\ns_add_u32 {sT0}, {sT0}, {sT1}\ns_add_u32 {sT0}, {sT0}, {sZB}")
        self.hstore([f"buffer_store_dwordx4 v[56:59], v8, {SRD_WS}, {sT0} offen",
                     f"buffer_store_dwordx4 v[60:63], v8, {SRD_WS}, {sT0} offen offset:1024"])

    def r1(self):
        a = self
        a.I(f"v_lshlrev_b32 v2, 4, {vLANE}\ns_lshl_b32 {sT0}, {sSLOT}, 14\ns_add_u32 {sT0}, {sT0}, {WS_Y}\ns_lshl_b32 {sT1}, {sW}, 12\ns_add_u32 {sT0}, {sT0}, {sT1}")
        a.I(f"v_and_b32 v3, 3, {vLANE}\nv_lshlrev_b32 v3, 11, v3\nv_lshrrev_b32 v4, 2, {vTID}\nv_bfe_u32 v4, {vLANE}, 2, 4\nv_lshl_add_u32 v3, v4, 2, v3")
        a.I(f"s_lshl_b32 {sT1}, {sW}, 8\ns_add_u32 {sT1}, {sT1}, {L_YT}\nv_add_u32 v3, {sT1}, v3")
        for j in range(8):
            a.I(f"v_accvgpr_read_b32 v{48+j}, a{224+j}")
        for j in range(8):
            a.I(f"v_lshlrev_b32 v{16+2*j}, 16, v{48+j}\nv_and_b32 v{16+2*j+1}, {sMASKHI}, v{48+j}")
        self.tagpoll("v2", sT0, (0, 1024, 2048, 3072), 64, sleep=4)
        a.stamp("y arrived")
        for j in range(4):
            a.I(f"v_add_u32 v4, {64*j}, v3")
            a.I(f"ds_write2st64_b32 v4, v{64+4*j}, v{65+4*j} offset0:0 offset1:4")
        self.rowaddr("v4", "v5")
        a.I(f"v_add_u32 v4, {L_YT}, v4")
        a.I("s_waitcnt lgkmcnt(0)\ns_barrier")
        for i, off in enumerate((0, 32, 64, 96)):
            a.I(f"ds_read_b64 v[{8+2*i}:{9+2*i}], v4 offset:{off}")
        a.I("s_waitcnt lgkmcnt(0)")
        for j in range(8):
            a.I(f"v_lshlrev_b32 v{32+2*j}, 16, v{8+j}\nv_and_b32 v{32+2*j+1}, {sMASKHI}, v{8+j}")
            a.I(f"v_accvgpr_write_b32 a{232+j}, v{8+j}")
        self.r_core(False)

    def r2(self):
        a = self
        a.I(f"v_lshlrev_b32 v8, 4, {vLANE}")
        a.I(f"s_lshl_b32 {sT0}, {sSLOT}, 14\ns_add_u32 {sT0}, {sT0}, {sOB}\ns_lshl_b32 {sT1}, {sW}, 12\ns_add_u32 {sT0}, {sT0}, {sT1}")
        for j in range(8):
            a.I(f"v_accvgpr_read_b32 v{48+j}, a{224+j}\nv_accvgpr_read_b32 v{56+j}, a{232+j}")
        for j in range(8):
            a.I(f"v_lshlrev_b32 v{16+2*j}, 16, v{48+j}\nv_and_b32 v{16+2*j+1}, {sMASKHI}, v{48+j}")
            a.I(f"v_lshlrev_b32 v{32+2*j}, 16, v{56+j}\nv_and_b32 v{32+2*j+1}, {sMASKHI}, v{56+j}")
        a.I(f"s_lshl_b32 {sT5}, {sW}, 11\ns_add_u32 {sT5}, {sT5}, {L_CT}")
        a.I(f"v_lshlrev_b32 v6, 3, {vLANE}\nv_add_u32 v6, {sT5}, v6\nv_lshlrev_b32 v7, 5, {vLANE}\nv_add_u32 v7, {sT5}, v7")
        self.tagpoll("v8", sT0, (0, 1024, 2048, 3072), 64, sleep=1)
        a.stamp("o arrived")
        for j in range(4):
            a.I(f"ds_write_b64 v6, v[{64+4*j}:{65+4*j}] offset:{512*j}")
        a.I("ds_read_b128 v[64:67], v7\nds_read_b128 v[68:71], v7 offset:16\ns_waitcnt lgkmcnt(0)")
        for j in range(8):
            a.I(f"v_lshlrev_b32 v{48+2*j}, 16, v{64+j}\nv_and_b32 v{48+2*j+1}, {sMASKHI}, v{64+j}")
        for e in range(16):
            a.I(f"v_add_f32 v{16+e}, v{16+e}, v{48+e}")
        for j in range(8):
            a.I(f"v_cvt_pk_bf16_f32 v{48+j}, v{16+2*j}, v{16+2*j+1}")
        for j in range(8):
            a.I(f"v_lshlrev_b32 v{16+2*j}, 16, v{48+j}\nv_and_b32 v{16+2*j+1}, {sMASKHI}, v{48+j}")
        self.r_core(True)

    def gemm1_pre(self):
        a = self
        a.I(f"v_lshrrev_b32 v2, 4, {vLANE}\nv_lshlrev_b32 v2, 3, v2\ns_mul_i32 {sT0}, {sCC}, 224")
        for aa in range(7):
            a.I(f"buffer_load_dwordx2 v[{64+2*aa}:{65+2*aa}], v2, {SRD_B1}, {sT0} offen offset:{32*aa}")
        a.I("s_waitcnt vmcnt(0)")
        for aa in range(7):
            for rt in range(2):
                d = 8 + (aa * 2 + rt) * 4
                for h in range(2):
                    s = 64 + 2 * aa + h
                    a.I(f"v_lshlrev_b32 v{d+2*h}, 16, v{s}\nv_and_b32 v{d+2*h+1}, {sMASKHI}, v{s}")

    def gemm1(self, w2range=None):
        a = self
        ZB = 120
        if w2range and self.o.get("htouch_g1", 0):
            a.I(f"s_lshl_b32 {sT0}, {sX}, 4\ns_lshl_b32 {sT1}, {sRH}, 3\ns_add_u32 {sT0}, {sT0}, {sT1}\ns_lshl_b32 {sT1}, {sW}, 1\ns_add_u32 {sT0}, {sT0}, {sT1}")
            a.I(f"s_mul_i32 {sT0}, {sT0}, 57344\ns_add_u32 {sT0}, {sT0}, {sHB}")
            a.I(f"s_lshr_b32 {sT1}, {sCC}, 1\ns_mul_i32 {sT1}, {sT1}, 7168\ns_add_u32 s75, {sT0}, {sT1}")
            a.I(f"s_and_b32 {sT2}, {sCC}, 1\ns_mul_i32 {sT2}, {sT2}, 3072")
            a.I(f"v_and_b32 v2, 31, {vLANE}\nv_lshlrev_b32 v3, 7, v2\nv_add_u32 v4, {sT2}, v3")
            a.I(f"v_add_u32 v3, {6144-24*128}, v3\nv_cmp_gt_u32 vcc, 24, v2\nv_cndmask_b32 v3, v3, v4, vcc")
            a.I(f"v_lshrrev_b32 v2, 5, {vLANE}\nv_mul_u32_u24 v2, 57344, v2\nv_add_u32 v7, v3, v2")
        a.I(f"v_lshlrev_b32 v2, 4, {vLANE}")
        a.I(f"s_lshl_b32 {sT0}, {sRH}, 17")
        a.I(f"s_lshl_b32 {sT1}, {sW}, 15\ns_add_u32 {sT0}, {sT0}, {sT1}\ns_add_u32 {sT0}, {sT0}, {sZB}")
        a.I(f"s_add_u32 {sT1}, {sT0}, 16384")
        PD = self.o.get("g1_pd", 4)

        def zload(t):
            out = []
            for rt in range(2):
                d = ZB + (t * 2 + rt) * 4
                so = sT0 if rt == 0 else sT1
                x = f"buffer_load_dwordx4 v[{d}:{d+3}], v2, {SRD_WS}, {so} offen offset:{(t%4)*1024} sc1"
                if rt == 1 and t % 4 == 3:
                    x += f"\ns_add_u32 {sT0}, {sT0}, 4096\ns_add_u32 {sT1}, {sT1}, 4096"
                out.append(x)
            return out
        order = []
        for t in range(PD):
            for x in zload(t):
                a.I(x); order.append(('z', t))
        w2l = []
        if w2range and self.o.get("htouch_g1", 0):
            a.I(f"buffer_load_dword v254, v7, {SRD_WS}, s75 offen"); order.append(('t', 0))
        if w2range:
            self.w2_setup("v6")
            a.I(f"s_mov_b32 s73, {sT3}")
            w2l = [x.replace(sT3, "s73").replace(sT2, "s74") for x in self.w2_load_list("v6", *w2range)]
        WB = 64
        a.I(f"v_lshrrev_b32 v3, 2, {vLANE}\nv_mul_u32_u24 v3, 224, v3\nv_and_b32 v4, 3, {vLANE}\nv_lshl_add_u32 v3, v4, 3, v3\nv_add_u32 v4, 57344, v3")

        def wread(t, aa, hh):
            b = WB + 28 * (t % 2)
            base, tt = ("v3", t) if t < 8 else ("v4", t - 8)
            off = L_W1 + (32 * tt + 16 * hh) * 224 + 32 * aa
            return f"ds_read_b64_tr_b16 v[{b+4*aa+2*hh}:{b+4*aa+2*hh+1}], {base} offset:{off}"
        for aa in range(7):
            for hh in range(2): a.I(wread(0, aa, hh))
        for t in range(16):
            b = WB + 28 * (t % 2)
            for aa in range(7):
                lg = 12 if t + 1 < 16 else (7 - aa) * 2 - 2
                if aa == 0:
                    last = max(i for i, o in enumerate(order) if o == ('z', t))
                    a.I(f"s_waitcnt vmcnt({len(order) - 1 - last}) lgkmcnt({lg})")
                else:
                    a.I(f"s_waitcnt lgkmcnt({lg})")
                for rt in range(2):
                    d = 8 + (aa * 2 + rt) * 4
                    z = ZB + (t * 2 + rt) * 4
                    a.I(f"v_mfma_f32_16x16x32_bf16 v[{d}:{d+3}], v[{b+4*aa}:{b+4*aa+3}], v[{z}:{z+3}], v[{d}:{d+3}]")
                    if t + 1 < 16:
                        a.I(wread(t + 1, aa, rt))
                    if aa == 1 and t + PD < 16:
                        a.I(zload(t + PD)[rt]); order.append(('z', t + PD))
                    if aa in (3, 5) and rt == 0 and w2l:
                        a.I(w2l.pop(0)); order.append(('w', 0))
        for x in w2l: a.I(x)
        self.stamp("g1 mfma done")
        c1 = -2.0 * 0.7978845608028654 * 1.4426950408889634
        c2 = c1 * 0.044715
        a.I(f"v_mov_b32 v64, {f32bits(c2)}")
        a.I(f"s_lshl_b32 {sT0}, {sX}, 4\ns_lshl_b32 {sT1}, {sRH}, 3\ns_add_u32 {sT0}, {sT0}, {sT1}\ns_lshl_b32 {sT1}, {sW}, 1\ns_add_u32 {sT0}, {sT0}, {sT1}")
        a.I(f"s_mul_i32 {sT0}, {sT0}, 57344\ns_add_u32 {sT0}, {sT0}, {sHB}")
        a.I(f"s_lshr_b32 {sT1}, {sCC}, 1\ns_mul_i32 {sT1}, {sT1}, 7168\ns_add_u32 {sT0}, {sT0}, {sT1}")
        a.I(f"s_and_b32 {sT2}, {sCC}, 1\ns_mul_i32 {sT1}, {sT2}, 3072\ns_add_u32 {sT1}, {sT0}, {sT1}")
        a.I(f"s_lshl_b32 {sT2}, {sT2}, 3\ns_add_u32 {sT2}, {sT0}, {sT2}\ns_add_u32 {sT2}, {sT2}, 6144")
        a.I(f"s_add_u32 {sT3}, {sT1}, 57344\ns_add_u32 {sT4}, {sT2}, 57344")
        for aa in range(7):
            for rt in range(2):
                d = 8 + (aa * 2 + rt) * 4
                t0 = 68 + 4 * ((aa * 2 + rt) % 2)
                for j in range(4): a.I(f"v_mul_f32 v{t0+j}, v{d+j}, v{d+j}")
                for j in range(4): a.I(f"v_fmaak_f32 v{t0+j}, v64, v{t0+j}, {f32bits(c1)}")
                for j in range(4): a.I(f"v_mul_f32 v{t0+j}, v{t0+j}, v{d+j}")
                for j in range(4): a.I(f"v_exp_f32 v{t0+j}, v{t0+j}")
                for j in range(4): a.I(f"v_add_f32 v{t0+j}, 1.0, v{t0+j}")
                for j in range(4): a.I(f"v_rcp_f32 v{t0+j}, v{t0+j}")
                for j in range(4): a.I(f"v_mul_f32 v{d+j}, v{d+j}, v{t0+j}")
        st = []
        for rt in range(2):
            so1 = sT1 if rt == 0 else sT3
            so2 = sT2 if rt == 0 else sT4
            for i in range(3):
                p = 80 + (rt * 3 + i) * 4
                for h in range(2):
                    d = 8 + ((2 * i + h) * 2 + rt) * 4
                    a.I(f"v_cvt_pk_bf16_f32 v{p+2*h}, v{d}, v{d+1}\nv_cvt_pk_bf16_f32 v{p+2*h+1}, v{d+2}, v{d+3}")
                st.append(f"buffer_store_dwordx4 v[{p}:{p+3}], v2, {SRD_WS}, {so1} offen offset:{i*1024}")
            d = 8 + (6 * 2 + rt) * 4
            p = 104 + 2 * rt
            a.I(f"v_cvt_pk_bf16_f32 v{p}, v{d}, v{d+1}\nv_cvt_pk_bf16_f32 v{p+1}, v{d+2}, v{d+3}")
            st.append(f"buffer_store_dwordx2 v[{p}:{p+1}], v2, {SRD_WS}, {so2} offen")
        self.hstore(st)

    def gemm2(self, final):
        a = self
        a.I(f"v_lshlrev_b32 v2, 4, {vLANE}")
        a.I(f"s_lshl_b32 {sT0}, {sX}, 4\ns_lshl_b32 {sT1}, {sRQ}, 2\ns_add_u32 {sT0}, {sT0}, {sT1}\ns_mul_i32 {sT0}, {sT0}, 57344")
        a.I(f"s_mul_i32 {sT1}, {sW}, 14336\ns_add_u32 {sT0}, {sT0}, {sT1}\ns_add_u32 {sT0}, {sT0}, {sHB}")

        if final:
            a.I(f"v_and_b32 v4, 15, {vLANE}\nv_lshlrev_b32 v4, 10, v4\nv_lshrrev_b32 v5, 4, {vLANE}\nv_lshl_add_u32 v4, v5, 4, v4")
            a.I(f"s_lshl_b32 {sT2}, {sX}, 18\ns_lshl_b32 {sT3}, {sRQ}, 16\ns_add_u32 {sT2}, {sT2}, {sT3}\ns_lshl_b32 {sT3}, {sW}, 14\ns_add_u32 {sT2}, {sT2}, {sT3}")
            a.I(f"s_lshl_b32 {sT3}, {sNT}, 7\ns_add_u32 {sT2}, {sT2}, {sT3}\ns_add_u32 {sT2}, {sT2}, {WS_X3}")
        PD = self.o.get("g2_pd", 14)
        for idx in range(4):
            a.I(f"s_add_u32 {sT1}, {sW}, {1+idx}\ns_and_b32 {sT1}, {sT1}, 3\ns_mul_i32 {sT1}, {sT1}, 57344\ns_add_u32 s{76+idx}, {sT1}, {sT0}")

        def hload(n):
            idx, k = divmod(n, 14)
            b = 40 + 4 * (n % 42)
            x = ""
            if k % 4 == 0 and k > 0:
                x = f"s_add_u32 s{76+idx}, s{76+idx}, 4096\n"
            return x + f"buffer_load_dwordx4 v[{b}:{b+3}], v2, {SRD_WS}, s{76+idx} offen offset:{(k%4)*1024} sc1"
        for n in range(PD): a.I(hload(n))
        if final:
            a.I(f"buffer_load_dwordx4 v[208:211], v4, {SRD_WS}, {sT2} offen sc1")
            a.I(f"buffer_load_dwordx4 v[212:215], v4, {SRD_WS}, {sT2} offen offset:64 sc1")
        a.I(f"v_lshrrev_b32 v5, 4, {vLANE}\nv_lshlrev_b32 v5, 3, v5\ns_lshl_b32 {sT2}, {sNT}, 7")
        for aa in range(4):
            a.I(f"buffer_load_dwordx2 v[{216+2*aa}:{217+2*aa}], v5, {SRD_B2}, {sT2} offen offset:{32*aa}")
        extra = 6 if final else 4
        if not final:
            self.tags_into((224, 228, 232, 236))
        a.I(f"v_lshlrev_b32 v3, 4, {vLANE}")
        issued = PD
        for idx in range(4):
            acc = 8 + 16 * (idx % 2)
            for k in range(14):
                n = idx * 14 + k
                b = 40 + 4 * (n % 42)
                younger = (issued - 1 - n) + (extra if n < PD else 0)
                a.I(f"s_waitcnt vmcnt({younger})")
                for aa in range(4):
                    ar = (k * 4 + aa) * 4
                    d = acc + 4 * aa
                    c = "0" if k == 0 else f"v[{d}:{d+3}]"
                    a.I(f"v_mfma_f32_16x16x32_bf16 v[{d}:{d+3}], a[{ar}:{ar+3}], v[{b}:{b+3}], {c}")
                    if aa == 1 and issued < 56:
                        a.I(hload(issued)); issued += 1
            if idx < 3:
                a.I(f"s_add_u32 {sT1}, {sW}, {1+idx}\ns_and_b32 {sT1}, {sT1}, 3\ns_mul_i32 {sT1}, {sT1}, 12288\ns_add_u32 {sT1}, {sT1}, {L_SCR + (2-idx)*4096}")
                a.I(f"v_add_u32 v4, {sT1}, v3")
                for aa in range(4):
                    a.I(f"ds_write_b128 v4, v[{acc+4*aa}:{acc+4*aa+3}] offset:{aa*1024}")
        self.stamp("g2 mfma done")
        a.I("s_waitcnt lgkmcnt(0)\ns_barrier")
        a.I(f"s_mul_i32 {sT1}, {sW}, 12288\ns_add_u32 {sT1}, {sT1}, {L_SCR}\nv_add_u32 v4, {sT1}, v3")
        for s in range(3):
            for aa in range(4):
                d = 40 + s * 16 + aa * 4
                a.I(f"ds_read_b128 v[{d}:{d+3}], v4 offset:{s*4096 + aa*1024}")
        for aa in range(4):
            for h in range(2):
                s = 216 + 2 * aa + h
                a.I(f"v_lshlrev_b32 v{88+4*aa+2*h}, 16, v{s}\nv_and_b32 v{88+4*aa+2*h+1}, {sMASKHI}, v{s}")
        for e in range(16):
            a.I(f"v_add_f32 v{24+e}, v{24+e}, v{88+e}")
        a.I("s_waitcnt lgkmcnt(0)")
        for e in range(16):
            a.I(f"v_add_f32 v{24+e}, v{24+e}, v{40+e}\nv_add_f32 v{56+e}, v{56+e}, v{72+e}")
        for e in range(16):
            a.I(f"v_add_f32 v{24+e}, v{24+e}, v{56+e}")
        if not final:
            for j in range(8):
                a.I(f"v_cvt_pk_bf16_f32 v{40+j}, v{24+2*j}, v{24+2*j+1}")
            a.I("s_barrier")
            a.I(f"v_lshrrev_b32 v4, 4, {vLANE}\nv_lshlrev_b32 v4, 11, v4\nv_and_b32 v5, 15, {vLANE}\nv_lshl_add_u32 v4, v5, 4, v4")
            a.I(f"s_lshl_b32 {sT2}, {sX}, 19\ns_lshl_b32 {sT3}, {sRQ}, 17\ns_add_u32 {sT2}, {sT2}, {sT3}\ns_lshl_b32 {sT3}, {sW}, 15\ns_add_u32 {sT2}, {sT2}, {sT3}")
            a.I(f"s_lshl_b32 {sT3}, {sNT}, 8\ns_add_u32 {sT2}, {sT2}, {sT3}\ns_add_u32 {sT2}, {sT2}, {sOB}")
            a.I(f"s_add_u32 {sT3}, {sT2}, 8192\ns_add_u32 {sT4}, {sT2}, 16384\ns_add_u32 {sT1}, {sT2}, 24576")
            a.I(f"s_lshl_b32 {sT5}, {sW}, 11\ns_add_u32 {sT5}, {sT5}, {L_CT}")
            a.I(f"v_lshlrev_b32 v6, 5, {vLANE}\nv_add_u32 v6, {sT5}, v6")
            a.I("ds_write_b128 v6, v[40:43]\nds_write_b128 v6, v[44:47] offset:16")
            a.I(f"v_bfe_u32 v7, {vLANE}, 2, 2\nv_lshlrev_b32 v7, 9, v7\nv_lshrrev_b32 v6, 4, {vLANE}\nv_lshl_add_u32 v7, v6, 5, v7\nv_and_b32 v6, 3, {vLANE}\nv_lshl_add_u32 v7, v6, 3, v7\nv_add_u32 v7, {sT5}, v7")
            for j in range(4):
                a.I(f"ds_read_b64 v[{224+4*j}:{225+4*j}], v7 offset:{128*j}")
            a.I("s_waitcnt lgkmcnt(0)")
            self.hstore([f"buffer_store_dwordx4 v[{224+4*j}:{227+4*j}], v4, {SRD_WS}, {(sT2, sT3, sT4, sT1)[j]} offen" for j in range(4)])
        else:
            for j in range(8):
                a.I(f"v_cvt_pk_bf16_f32 v{40+j}, v{24+2*j}, v{24+2*j+1}")
            for j in range(8):
                a.I(f"v_lshlrev_b32 v{24+2*j}, 16, v{40+j}\nv_and_b32 v{24+2*j+1}, {sMASKHI}, v{40+j}")
                a.I(f"v_lshlrev_b32 v{56+2*j}, 16, v{208+j}\nv_and_b32 v{56+2*j+1}, {sMASKHI}, v{208+j}")
            for e in range(16):
                a.I(f"v_add_f32 v{24+e}, v{24+e}, v{56+e}")
            for j in range(8):
                a.I(f"v_cvt_pk_bf16_f32 v{40+j}, v{24+2*j}, v{24+2*j+1}")
            a.I(f"v_and_b32 v4, 15, {vLANE}\nv_lshlrev_b32 v4, 10, v4\nv_lshrrev_b32 v5, 4, {vLANE}\nv_lshl_add_u32 v4, v5, 3, v4")
            a.I(f"s_lshl_b32 {sT2}, {sX}, 18\ns_lshl_b32 {sT3}, {sRQ}, 16\ns_add_u32 {sT2}, {sT2}, {sT3}\ns_lshl_b32 {sT3}, {sW}, 14\ns_add_u32 {sT2}, {sT2}, {sT3}")
            a.I(f"s_lshl_b32 {sT3}, {sNT}, 7\ns_add_u32 {sT2}, {sT2}, {sT3}")
            for aa in range(4):
                a.I(f"buffer_store_dwordx2 v[{40+2*aa}:{41+2*aa}], v4, {SRD_OUT}, {sT2} offen offset:{32*aa}")

    def build(self):
        a = self
        self.stamps = []
        a.prologue()
        a.other_loads()
        if self.o.get("diag"):
            a.stamp("other issued")
            a.I(f"s_load_dword {sT}, s[90:91], 0")
            a.I(f"s_lshl_b32 {sT0}, {sX}, 7\ns_lshl_b32 {sT1}, {sR}, 2\ns_add_u32 {sT0}, {sT0}, {sT1}")
            a.I(f"s_load_dword {sD0}, s[74:75], {sT0}")
        a.I("s_waitcnt lgkmcnt(0)")
        a.I(f"s_and_b32 {sT}, {sT}, 0xfffffff0\ns_add_u32 {sT}, {sT}, 0x9e3779b0")
        a.I(f"s_mul_i32 {sTH}, {sT}, 0x85ebca6b\ns_add_u32 {sTH}, {sTH}, 0xc2b2ae35")
        a.I(f"s_lshl_b32 {sT0}, {sSLOT}, 2\ns_add_u32 {sT0}, {sT0}, {WS_FLAGS + HOP_REG * 0x400}")
        a.I(f"s_or_b32 {sT1}, {sT}, {sXCC}\nv_mov_b32 v6, {sT1}\ns_mov_b64 exec, 1")
        a.I(f"buffer_store_dword v6, off, {SRD_WS}, {sT0} sc1\ns_mov_b64 exec, -1")
        a.p0_compute(5 + self.nearly + (1 if self.o.get('apath', 0) else 0))
        a.stamp("p0 computed")
        a.I(f"s_waitcnt vmcnt({1 + (8 if self.o.get('apath', 0) else 4) + self.nearly})")
        a.toeplitz_build()
        a.stamp("toeplitz")
        if self.o.get("drain_a"):
            a.I("s_waitcnt vmcnt(0)")
            a.stamp("p0 drained")
        a.maybe_stop(1)
        a.hop_a()
        a.I(f"s_xor_b32 {sTH}, {sTH}, 0x11111111")
        a.stamp("u loaded")
        a.conv_main()
        a.stamp("conv main")
        a.conv_epilogue()
        a.stamp("y stored")
        a.maybe_stop(2)
        K1 = self.o.get("w2k1", 6)
        a.w2_setup("v144")
        for x in a.w2_load_list("v144", 0, K1): a.I(x)
        a.stamp("w2a issued")
        a.I(f"s_lshl_b32 {sT5}, {sX}, 5")
        a.poll(HOP_REG, sT5, 32, purity=True)
        a.I(f"s_lshl_b32 {sT0}, {sX}, 18\ns_add_u32 {sZB}, {sT0}, {WS_Z1}\ns_mov_b32 {sOB}, {WS_O}\ns_mov_b32 {sHB}, {WS_H1}")
        a.I(f"s_lshl_b32 {sT0}, {sX}, 19\ns_add_u32 {sT0}, {sT0}, {WS_KVT}\ns_cmp_eq_u32 {sPURE}, 1\ns_cmov_b32 {sZB}, {sT0}\ns_cmov_b32 {sOB}, {WS_Y}")
        a.I("s_waitcnt vmcnt(0)")
        a.I("s_barrier")
        a.r1()
        skip = a.lab("ep")
        a.I(f"s_or_b32 {sT0}, {sSLOT}, {sW}\ns_cmp_lg_u32 {sT0}, 0\ns_cbranch_scc1 {skip}")
        a.I(f"v_mov_b32 v2, {sT}\ns_mov_b64 exec, 1\nbuffer_store_dword v2, off, {SRD_WS}, 0 sc1\ns_mov_b64 exec, -1")
        a.a.L(skip)
        a.signal(HOP_C1)
        a.I(f"s_xor_b32 {sTH}, {sTH}, 0x33333333")
        a.stamp("r1 done")
        a.maybe_stop(3)
        a.w2_convert([], 0, K1)
        a.stamp("w2a conv")
        for layer in range(2):
            hopc = HOP_C1 if layer == 0 else HOP_C2
            hopd = HOP_D1 if layer == 0 else HOP_D2
            a.gemm1_pre()
            a.I(f"s_lshl_b32 {sT5}, {sX}, 5\ns_lshl_b32 {sT4}, {sRH}, 4\ns_add_u32 {sT5}, {sT5}, {sT4}")
            a.poll(hopc, sT5, 16)
            a.stamp("c polled")
            a.gemm1((K1, 14) if layer == 0 else None)
            a.signal(hopd)
            a.stamp("g1 done")
            a.maybe_stop(4 + 3 * layer)
            if layer == 0:
                a.w2_convert([], K1, 14)
                a.I("s_barrier")
                a.stamp("w2b conv")
            a.I(f"s_lshl_b32 {sT5}, {sX}, 5\ns_lshl_b32 {sT4}, {sRH}, 4\ns_add_u32 {sT5}, {sT5}, {sT4}")
            a.poll(hopd, sT5, 16)
            a.stamp("d polled")
            a.gemm2(layer == 1)
            if layer == 0:
                a.stamp("g2 done")
                a.maybe_stop(5)
                a.I(f"s_cmp_eq_u32 {sPURE}, 1\ns_cbranch_scc1 L_keepbuf\ns_add_u32 {sZB}, {sZB}, {WS_Z3 - WS_Z1}\ns_mov_b32 {sHB}, {WS_H3}")
                a.a.L("L_keepbuf")
                a.r2()
                a.signal(HOP_C2)
                a.stamp("r2 done")
                a.maybe_stop(6)
        a.a.L("L_end")
        if self.prof:
            a.I("s_waitcnt vmcnt(0)")
            a.stamp("end")
            skip = a.lab("pf")
            a.I(f"s_cmp_lg_u32 {sW}, 0\ns_cbranch_scc1 {skip}")
            a.I(f"v_writelane_b32 v255, {sPURE}, 62")
            a.I(f"v_lshlrev_b32 v2, 2, {vLANE}\ns_lshl_b32 {sT0}, {sSLOT}, 8\ns_add_u32 {sT0}, {sT0}, {WS_PROF}")
            a.I(f"buffer_store_dword v255, v2, {SRD_WS}, {sT0} offen")
            if self.o.get("dbg"):
                a.I("s_mov_b32 s64, s88\ns_mov_b32 s65, s89\ns_mov_b32 s66, 256\ns_mov_b32 s67, 0x20000")
                a.I("s_memrealtime s[0:1]\ns_waitcnt lgkmcnt(0)")
                a.I("v_readlane_b32 s68, v255, 63\ns_not_b32 s68, s68")
                a.I("v_mov_b32 v3, s68\nv_mov_b32 v4, s0\ns_mov_b64 exec, 1")
                a.I("buffer_atomic_umax v3, off, s[64:67], 0\nbuffer_atomic_umax v4, off, s[64:67], 0 offset:4\ns_mov_b64 exec, -1")
                sk2 = a.lab("dbg")
                a.I(f"s_cmp_lg_u32 {sSLOT}, {self.o.get('dbgslot', 37)}\ns_cbranch_scc1 {sk2}")
                sel = self.o["dbgsel"]
                a.I("v_readlane_b32 s69, v255, 0")
                for i, st in enumerate(sel):
                    a.I(f"v_readlane_b32 s68, v255, {st}\ns_sub_u32 s68, s68, s69\nv_mov_b32 v3, s68\ns_mov_b64 exec, 1")
                    a.I(f"buffer_store_dword v3, off, s[64:67], 0 offset:{8+4*i}\ns_mov_b64 exec, -1")
                a.a.L(sk2)
            a.a.L(skip)
        a.a.L("L_exit")
        a.I("s_endpgm")
        a.a.L("L_codeend")
        body = a.a.finish()
        hdr = f"""; Fused persistent kernel: conv (MFMA Toeplitz) + 2x (LN, LN, MLP) with in-launch hand-offs
; @launch grid=(256,1,1) block=(256,1,1) lds={LDS_BYTES}
.amdgcn_target "amdgcn-amd-amdhsa--gfx950"
.text
.globl {NAME}
.p2align 8
.type {NAME},@function
{NAME}:
"""
        ftr = f""".section .rodata,"a"
.p2align 6
.amdhsa_kernel {NAME}
  .amdhsa_next_free_vgpr 512
  .amdhsa_next_free_sgpr 102
  .amdhsa_accum_offset 256
  .amdhsa_group_segment_fixed_size 0
  .amdhsa_kernarg_size 112
  .amdhsa_user_sgpr_count 2
  .amdhsa_user_sgpr_kernarg_segment_ptr 1
  .amdhsa_system_sgpr_workgroup_id_x 1
.end_amdhsa_kernel
"""
        return hdr + body + ftr


if __name__ == "__main__":
    import argparse
    ap = argparse.ArgumentParser()
    ap.add_argument("--stop", type=int, default=99)
    ap.add_argument("--prof", action="store_true")
    ap.add_argument("--slow", action="store_true")
    ap.add_argument("--opt", action="append", default=[])
    ap.add_argument("-o", default="k.s")
    args = ap.parse_args()
    opts = {}
    for o in args.opt:
        k, v = o.split("="); opts[k] = int(v)
    if opts.get("dbg"):
        opts["dbgsel"] = [3, 4, 6, 7, 8, 9, 10, 12, 14, 16, 18, 19, 23, 25]
    g = Gen(stop=args.stop, prof=args.prof, force_slow=args.slow, opts=opts)
    txt = g.build()
    open(args.o, "w").write(txt)
    print("lines", txt.count("\n"), "nop insertions", g.a.n_nops)
    if args.prof: open(args.o + ".stamps", "w").write(",".join(g.stamps))
```

```python
import sys, struct
from asmlib import Asm

NAME = "interleave_layers__ssm_conv_h3__mixer_channel_mlp__prompt_kernel"

WS_FLAGS = 0x1000
WS_PROF = 0x8000
WS_KVT = 0x200000
WS_Y = 0x600000
WS_O = 0xA00000
WS_Z1 = 0xE00000
WS_Z3 = 0x1000000
WS_X3 = 0x1200000
WS_H1 = 0x1400000
WS_H3 = 0x1C00000
WS_KVB = 0x2400000
WS_SIZE = 0x2800000
HOP_REG, HOP_C1, HOP_D1, HOP_C2, HOP_D2 = range(5)

L_W1 = 0
L_CR = 114688
CS = 4160
L_TOEP = L_CR
L_UPL = L_CR + 2 * 4 * CS
PS = 1536
L_DUMMY = L_UPL + 2 * 4 * PS
L_XCH = L_CR
L_SCR = L_CR
L_YT = L_CR + 40960
L_P0T = 0
L_CT = L_CR + 32768
LDS_BYTES = 163840

sX, sR, sW = "s4", "s5", "s6"
SRD_Q, SRD_K, SRD_V, SRD_H = "s[8:11]", "s[12:15]", "s[16:19]", "s[20:23]"
SRD_W1, SRD_W2, SRD_WS, SRD_OUT = "s[24:27]", "s[28:31]", "s[32:35]", "s[36:39]"
SRD_SK, SRD_B1, SRD_B2 = "s[40:43]", "s[44:47]", "s[48:51]"
SRD_DBG = "s[80:83]"
sOB = "s84"
sPUREA = "s85"
sSLOT = "s52"
sD0 = "s53"
sZB = "s54"
sC4096 = "s55"
sSPIN = "s56"
sT0, sT1, sT2, sT3, sT4, sT5 = "s57", "s58", "s59", "s60", "s61", "s62"
sMASKLO = "s63"
sM0, sM1, sM2, sM3 = "s[64:65]", "s[66:67]", "s[68:69]", "s[70:71]"
sHB = "s72"
sMASKHI = "s92"
sRH, sCC, sRQ, sNT = "s93", "s94", "s95", "s96"
sEPS = "s97"
sT, sTH, sTAG = "s98", "s99", "s[98:99]"
sPURE = "s100"
sXCC = "s101"

vTID, vLANE = "v0", "v1"


def f32bits(x):
    return "0x%08x" % struct.unpack("<I", struct.pack("<f", x))[0]


class Gen:
    def __init__(self, stop=99, prof=False, force_slow=False, opts=None):
        self.a = Asm()
        self.stop = stop
        self.prof = prof
        self.nlabel = 0
        self.nstamp = 0
        self.force_slow = force_slow
        self.o = opts or {}

    def lab(self, base):
        self.nlabel += 1
        return f"L_{base}_{self.nlabel}"

    def I(self, s): self.a.I(s)
    def C(self, s): self.a.C(s)

    def stamp(self, name):
        if not self.prof: return
        i = self.nstamp; self.nstamp += 1
        self.C(f"stamp {i}: {name}")
        self.I(f"s_memtime s[0:1]\ns_waitcnt lgkmcnt(0)\nv_writelane_b32 v255, s0, {i}")
        self.stamps.append(name)

    def hstore(self, instrs, local=True, flag=None):
        a = self
        if not local:
            for i in instrs: a.I(i + " sc1")
            return
        lp = a.lab("stp"); ld = a.lab("std")
        a.I(f"s_cmp_eq_u32 {flag or sPURE}, 1\ns_cbranch_scc1 {lp}")
        for i in instrs: a.I(i + " sc1")
        a.I(f"s_branch {ld}")
        a.a.L(lp)
        for i in instrs: a.I(i)
        a.a.L(ld)

    def signal(self, hop):
        a = self
        skip = a.lab("sig")
        a.I("s_waitcnt vmcnt(0) lgkmcnt(0)\ns_barrier")
        a.I(f"s_cmp_lg_u32 {sW}, 0\ns_cbranch_scc1 {skip}")
        a.I(f"s_lshl_b32 {sT0}, {sSLOT}, 2\ns_add_u32 {sT0}, {sT0}, {WS_FLAGS + hop * 0x400}")
        a.I(f"v_mov_b32 v2, {sT}")
        a.I("s_mov_b64 exec, 1")
        self.hstore([f"buffer_store_dword v2, off, {SRD_WS}, {sT0}"])
        a.I("s_mov_b64 exec, -1")
        a.a.L(skip)

    def poll(self, hop, first_slot_sgpr, n, purity=False):
        a = self
        loop = a.lab("poll"); done = a.lab("polld")
        a.I(f"s_lshl_b32 {sT0}, {first_slot_sgpr}, 2\ns_add_u32 {sT0}, {sT0}, {WS_FLAGS + hop * 0x400}")
        a.I(f"v_min_u32 v2, {n - 1}, {vLANE}\nv_lshlrev_b32 v2, 2, v2")
        a.I(f"s_mov_b32 {sSPIN}, 0x40000")
        a.a.L(loop)
        a.I(f"buffer_load_dword v3, v2, {SRD_WS}, {sT0} offen sc1")
        a.I("s_waitcnt vmcnt(0)")
        if purity:
            a.I(f"v_and_b32 v4, -16, v3\nv_cmp_ne_u32 vcc, {sT}, v4")
        else:
            a.I(f"v_cmp_ne_u32 vcc, {sT}, v3")
        a.I(f"s_cbranch_vccz {done}")
        a.I(f"s_sub_u32 {sSPIN}, {sSPIN}, 1\ns_cbranch_scc1 {done}")
        a.I("s_sleep 1")
        a.I(f"s_branch {loop}")
        a.a.L(done)
        if purity:
            a.I(f"v_and_b32 v4, 15, v3\nv_cmp_ne_u32 vcc, {sXCC}, v4")
            a.I(f"s_cmp_eq_u64 vcc, 0\ns_cselect_b32 {sPURE}, 1, 0")
            if self.force_slow:
                a.I(f"s_mov_b32 {sPURE}, 0")

    def tagpoll(self, vaddr, soff, offs, dst, sleep=2, limit=0x20000, ok_label=None):
        a = self
        loop = a.lab("tp"); done = ok_label or a.lab("tpd"); out = a.lab("tpo")
        so = soff if isinstance(soff, (list, tuple)) else [soff] * 4
        a.I(f"s_mov_b32 {sSPIN}, {limit}")
        a.a.L(loop)
        for j in range(4):
            a.I(f"buffer_load_dwordx4 v[{dst+4*j}:{dst+4*j+3}], {vaddr}, {SRD_WS}, {so[j]} offen offset:{offs[j]} sc1")
        a.I("s_waitcnt vmcnt(0)")
        ms = (sM0, sM1, sM2, sM3)
        for j in range(4):
            a.I(f"v_cmp_ne_u64 {ms[j]}, {sTAG}, v[{dst+4*j+2}:{dst+4*j+3}]")
        a.I(f"s_or_b64 {sM0}, {sM0}, {sM1}\ns_or_b64 {sM2}, {sM2}, {sM3}\ns_or_b64 {sM0}, {sM0}, {sM2}")
        a.I(f"s_cbranch_scc0 {done}")
        a.I(f"s_sub_u32 {sSPIN}, {sSPIN}, 1\ns_cbranch_scc1 {out}")
        a.I(f"s_sleep {sleep}")
        a.I(f"s_branch {loop}")
        a.a.L(out)
        if ok_label is None:
            a.a.L(done)

    def ctag_store(self, src, lds_base_sgpr_setup, vaddr, soffs, local, vtmp=8, wr_addr=None, flag=None):
        a = self
        a.I(lds_base_sgpr_setup)
        if wr_addr is None:
            a.I(f"v_lshlrev_b32 v6, 5, {vLANE}\nv_add_u32 v6, {sT5}, v6")
            a.I(f"ds_write_b128 v6, v[{src}:{src+3}]\nds_write_b128 v6, v[{src+4}:{src+7}] offset:16")
        else:
            wr_addr()
        a.I(f"v_lshlrev_b32 v7, 3, {vLANE}\nv_add_u32 v7, {sT5}, v7")
        for j in range(4):
            a.I(f"ds_read_b64 v[{vtmp+4*j}:{vtmp+4*j+1}], v7 offset:{512*j}")
        a.I("s_waitcnt lgkmcnt(0)")
        st = [f"buffer_store_dwordx4 v[{vtmp+4*j}:{vtmp+4*j+3}], {vaddr}, {SRD_WS}, {soffs[j][0]} offen offset:{soffs[j][1]}" for j in range(4)]
        if local == "none":
            pass
        elif local == "plain":
            for x in st: a.I(x)
        else:
            self.hstore(st, local, flag)

    def maybe_stop(self, k):
        if self.stop == k:
            self.I("s_branch L_end")

    def prologue(self):
        a = self
        a.I("s_cmp_ge_u32 s2, 256\ns_cbranch_scc1 L_exit")
        if self.o.get("codepf", 1):
            a.I("s_getpc_b64 s[92:93]")
            a.a.L("L_pc")
            a.I("s_lshr_b32 s3, s2, 3\ns_lshl_b32 s3, s3, 11\nv_and_b32 v2, 15, v0\nv_lshlrev_b32 v2, 7, v2\nv_add_u32 v2, s3, v2")
            a.I("v_min_u32 v2, L_codeend-L_pc-4, v2\nv_and_b32 v2, -4, v2")
            a.I("global_load_dword v254, v2, s[92:93]")
        if self.o.get("fixed_us"):
            a.I("s_memrealtime s[86:87]\ns_waitcnt lgkmcnt(0)\ns_mov_b32 s3, s86\nv_mov_b32 v253, s3")
        a.I("s_load_dwordx16 s[64:79], s[0:1], 0\ns_load_dwordx8 s[80:87], s[0:1], 64\ns_load_dwordx4 s[88:91], s[0:1], 96")
        if self.prof:
            a.I("v_mov_b32 v255, 0")
            a.I("s_memrealtime s[0:1]\ns_waitcnt lgkmcnt(0)\nv_writelane_b32 v255, s0, 63")
            a.stamp("start")
        a.I(f"s_and_b32 {sX}, s2, 7\ns_lshr_b32 {sR}, s2, 3")
        a.I(f"v_lshrrev_b32 v2, 6, v0\nv_and_b32 {vLANE}, 63, v0")
        a.I(f"v_readfirstlane_b32 {sW}, v2")
        a.I(f"s_lshl_b32 {sSLOT}, {sX}, 5\ns_add_u32 {sSLOT}, {sSLOT}, {sR}")
        a.I(f"s_mov_b32 {sC4096}, 4096\ns_mov_b32 {sMASKLO}, 0xffff\ns_mov_b32 {sMASKHI}, 0xffff0000")
        a.I(f"s_mov_b32 {sEPS}, {f32bits(1e-5)}")
        a.I(f"s_lshr_b32 {sRH}, {sR}, 4\ns_and_b32 {sCC}, {sR}, 15")
        a.I(f"s_lshr_b32 {sRQ}, {sR}, 3\ns_and_b32 {sNT}, {sR}, 7")
        a.I(f"s_getreg_b32 {sXCC}, hwreg(HW_REG_XCC_ID)\ns_and_b32 {sXCC}, {sXCC}, 15\ns_mov_b32 {sPURE}, 0")
        a.I("s_waitcnt lgkmcnt(0)")
        a.stamp("kernarg")

        def srd(n, lo, size):
            b = int(n[2:n.index(":")])
            a.I(f"s_mov_b32 s{b}, s{lo}\ns_mov_b32 s{b+1}, s{lo+1}\ns_mov_b32 s{b+2}, {size}\ns_mov_b32 s{b+3}, 0x20000")
        srd(SRD_K, 66, 2097152); srd(SRD_V, 68, 2097152); srd(SRD_SK, 70, 4096)
        if not self.o.get("diag"):
            a.I(f"s_load_dword {sT}, s[90:91], 0")
            a.I(f"s_lshl_b32 {sT0}, {sX}, 7\ns_lshl_b32 {sT1}, {sR}, 2\ns_add_u32 {sT0}, {sT0}, {sT1}")
            a.I(f"s_load_dword {sD0}, s[74:75], {sT0}")
        self.kv_loads()
        if self.o.get("diag"): a.stamp("kv issued")
        srd(SRD_H, 72, 2097152); srd(SRD_Q, 64, 2097152); srd(SRD_WS, 90, WS_SIZE)
        srd(SRD_W1, 78, 512 * 1792 * 2); srd(SRD_B1, 80, 1792 * 2); srd(SRD_W2, 82, 1792 * 512 * 2)
        srd(SRD_B2, 84, 1024); srd(SRD_OUT, 86, 2097152)
        if self.o.get("apath", 1):
            a.I(f"v_min_u32 v37, 127, {vTID}\nv_lshlrev_b32 v37, 7, v37\ns_lshl_b32 {sT0}, {sSLOT}, 14\ns_add_u32 {sT0}, {sT0}, {WS_KVT}")
            a.I(f"buffer_load_dword v38, v37, {SRD_WS}, {sT0} offen")

    def kv_loads(self):
        a = self
        a.I(f"v_and_b32 v2, 31, {vTID}\nv_lshrrev_b32 v3, 5, {vTID}")
        a.I(f"s_lshl_b32 {sT0}, {sR}, 16\ns_lshl_b32 {sT1}, {sX}, 7\ns_add_u32 {sT0}, {sT0}, {sT1}")
        a.I(f"v_lshlrev_b32 v4, 13, v3\nv_lshl_add_u32 v4, v2, 2, v4\nv_add_u32 v4, {sT0}, v4")
        a.I("v_subrev_u32 v5, 3072, v4")
        a.I("v_cmp_gt_u32 vcc, 1024, v4")
        a.I("v_mov_b32 v6, 0x40000000")
        a.I("v_cndmask_b32 v5, v5, v6, vcc")
        for j in range(3):
            a.I(f"buffer_load_dword v{8+j}, v5, {SRD_K}, 0 offen offset:{j*1024}")
        for j in range(8):
            so = "0" if j < 4 else sC4096
            a.I(f"buffer_load_dword v{11+j}, v4, {SRD_K}, {so} offen offset:{(j%4)*1024}")
        for j in range(8):
            so = "0" if j < 4 else sC4096
            a.I(f"buffer_load_dword v{20+j}, v4, {SRD_V}, {so} offen offset:{(j%4)*1024}")
        a.I(f"s_lshl_b32 {sT0}, {sX}, 9\nv_lshlrev_b32 v6, 4, v2")
        a.I(f"buffer_load_dwordx4 v[28:31], v6, {SRD_SK}, {sT0} offen")

    def other_loads(self):
        a = self
        a.I(f"v_lshlrev_b32 v6, 4, {vTID}\nv_sub_u32 v7, 4080, v6\nv_sub_u32 v6, 4064, v6")
        a.I(f"v_cmp_eq_u32 vcc, 255, {vTID}\nv_mov_b32 v32, 0x40000000\nv_cndmask_b32 v6, v6, v32, vcc")
        a.I(f"s_lshl_b32 {sT0}, {sX}, 18\ns_lshl_b32 {sT1}, {sR}, 13\ns_add_u32 {sT0}, {sT0}, {sT1}\ns_add_u32 {sT1}, {sT0}, 4096")
        a.I(f"buffer_load_dwordx4 v[40:43], v6, {SRD_H}, {sT0} offen")
        a.I(f"buffer_load_dwordx4 v[44:47], v7, {SRD_H}, {sT0} offen")
        a.I(f"buffer_load_dwordx4 v[48:51], v6, {SRD_H}, {sT1} offen")
        a.I(f"buffer_load_dwordx4 v[52:55], v7, {SRD_H}, {sT1} offen")
        n = 0
        if self.o.get("w2touch", 0):
            a.I(f"v_lshlrev_b32 v37, 7, {vTID}\ns_mul_i32 {sT0}, {sR}, 57344")
            a.I(f"buffer_load_dword v39, v37, {SRD_W2}, {sT0} offen"); n += 1
            a.I(f"v_min_u32 v37, 191, {vTID}\nv_lshlrev_b32 v37, 7, v37\ns_add_u32 {sT0}, {sT0}, 32768")
            a.I(f"buffer_load_dword v39, v37, {SRD_W2}, {sT0} offen"); n += 1
        self.nearly = n

    def w1_dma_setup(self):
        a = self
        a.I(f"s_mov_b32 {sT0}, 4682")
        for i in range(7):
            a.I(f"v_add_u32 v34, {64*i}, {vLANE}\nv_mul_u32_u24 v35, {sT0}, v34\nv_lshrrev_b32 v35, 16, v35")
            a.I(f"v_mul_u32_u24 v36, 14, v35\nv_sub_u32 v36, v34, v36")
            a.I(f"v_mul_u32_u24 v35, 3584, v35\nv_lshl_add_u32 v{148+i}, v36, 4, v35")
        a.I(f"s_mul_i32 s73, {sW}, {128*3584}\ns_mul_i32 {sT2}, {sCC}, 224\ns_add_u32 s73, s73, {sT2}")
        a.I(f"s_mul_i32 s74, {sW}, 28672")

    def w1_dma_list(self):
        out = []
        for g in range(4):
            for i in range(7):
                x = f"s_add_u32 m0, s74, {L_W1 + g*7168 + i*1024}\n"
                if g > 0 and i == 0:
                    x = f"s_add_u32 s73, s73, {32*3584}\n" + x
                out.append(x + f"buffer_load_dwordx4 v{148+i}, {SRD_W1}, s73 offen lds")
        return out

    def q_loads(self):
        a = self
        self.rowaddr("v33", "v34")
        a.I(f"s_lshl_b32 {sT0}, {sSLOT}, 13")
        for i, off in enumerate((0, 32, 64, 96)):
            a.I(f"buffer_load_dwordx2 a[{224+2*i}:{225+2*i}], v33, {SRD_Q}, {sT0} offen offset:{off}")

    def rowaddr(self, vd, vt):
        a = self
        a.I(f"v_lshrrev_b32 {vd}, 5, {vTID}\nv_lshlrev_b32 {vd}, 10, {vd}")
        a.I(f"v_bfe_u32 {vt}, {vTID}, 2, 3\nv_lshl_add_u32 {vd}, {vt}, 7, {vd}")
        a.I(f"v_and_b32 {vt}, 3, {vTID}\nv_lshl_add_u32 {vd}, {vt}, 3, {vd}")

    def tags_into(self, quads):
        for q in quads:
            self.I(f"v_mov_b32 v{q+2}, {sT}\nv_mov_b32 v{q+3}, {sTH}")

    def p0_compute(self, younger):
        a = self
        self.tags_into((104, 108, 112, 116))
        a.stamp("epoch")
        a.I(f"s_waitcnt vmcnt({younger})")
        a.stamp("kv arrived")
        for c in range(2):
            for h in range(2):
                src = 28 + 2 * c + h
                a.I(f"v_lshlrev_b32 v{56+4*c+2*h}, 16, v{src}\nv_and_b32 v{57+4*c+2*h}, {sMASKHI}, v{src}")
        for j in range(11):
            a.I(f"v_lshlrev_b32 v{64+j}, 16, v{8+j}\nv_and_b32 v{76+j}, {sMASKHI}, v{8+j}")
        for c in range(2):
            kb = 64 + 12 * c
            wb = 56 + 4 * c
            for j in range(8):
                a.I(f"v_mul_f32 v{88+8*c+j}, v{kb+j+3}, v{wb}")
            for i in range(1, 4):
                for j in range(8):
                    a.I(f"v_fmac_f32 v{88+8*c+j}, v{kb+j+3-i}, v{wb+i}")
        for j in range(8):
            a.I(f"v_lshlrev_b32 v{64+j}, 16, v{20+j}\nv_and_b32 v{76+j}, {sMASKHI}, v{20+j}")
        for c in range(2):
            for j in range(8):
                a.I(f"v_mul_f32 v{88+8*c+j}, v{88+8*c+j}, v{64+12*c+j}")
        for c in range(2):
            for j in range(4):
                a.I(f"v_cvt_pk_bf16_f32 v{64+4*c+j}, v{88+8*c+2*j}, v{88+8*c+2*j+1}")
        a.I(f"v_lshrrev_b32 v4, 2, {vLANE}\nv_lshlrev_b32 v4, 14, v4\nv_and_b32 v5, 3, {vLANE}\nv_lshl_add_u32 v4, v5, 4, v4")
        a.I(f"s_lshl_b32 {sT0}, {sX}, 19\ns_lshl_b32 {sT1}, {sR}, 9\ns_add_u32 {sT0}, {sT0}, {sT1}\ns_lshl_b32 {sT1}, {sW}, 7\ns_add_u32 {sT0}, {sT0}, {sT1}")
        a.I(f"s_add_u32 {sT0}, {sT0}, {WS_KVT}\ns_add_u32 {sT1}, {sT0}, {16*16384}")
        self.ctag_store(64, f"s_lshl_b32 {sT5}, {sW}, 11\ns_add_u32 {sT5}, {sT5}, {L_P0T}", "v4",
                        [(sT0, 0), (sT1, 0), (sT0, 64), (sT1, 64)], "plain" if self.o.get("apath", 1) else "none", vtmp=104)
        a.I(f"v_lshlrev_b32 v4, 4, {vLANE}\ns_lshl_b32 {sT0}, {sSLOT}, 14\ns_lshl_b32 {sT1}, {sW}, 12\ns_add_u32 {sT0}, {sT0}, {sT1}\ns_add_u32 {sT0}, {sT0}, {WS_KVB}")
        for j in range(4):
            a.I(f"buffer_store_dwordx4 v[{104+4*j}:{107+4*j}], v4, {SRD_WS}, {sT0} offen offset:{1024*j} sc1")

    def toeplitz_build(self):
        a = self
        a.I("v_mov_b32 v56, 0\nv_mov_b32 v57, 0\nv_mov_b32 v58, 0\nv_mov_b32 v59, 0")
        a.I(f"v_lshrrev_b32 v2, 5, {vTID}\nv_mul_u32_u24 v2, {PS}, v2\nv_and_b32 v3, 31, {vTID}\nv_lshl_add_u32 v2, v3, 4, v2\nv_add_u32 v2, {L_UPL}, v2")
        a.I(f"ds_write_b128 v2, v[56:59]")
        a.I(f"v_bfe_u32 v2, {vLANE}, 2, 3\nv_mul_u32_u24 v2, {CS}, v2\nv_and_b32 v3, 3, {vLANE}\nv_lshl_add_u32 v2, v3, 4, v2\nv_add_u32 v2, {L_TOEP+4096}, v2")
        a.I(f"ds_write_b128 v2, v[56:59]")
        a.I(f"v_lshlrev_b32 v2, 4, {vTID}\nv_add_u32 v2, {L_TOEP}, v2")
        for c in range(2):
            W = lambda k: f"v{40+8*c+k}"
            b0 = 60 + 20 * c
            for i in range(4): a.I(f"v_alignbit_b32 v{b0+i}, {W(7-i)}, {W(7-i)}, 16")
            for i in range(4): a.I(f"v_alignbit_b32 v{b0+4+i}, {W(6-i)}, {W(6-i)}, 16")
            for i in range(4): a.I(f"v_bfi_b32 v{b0+8+i}, {sMASKLO}, {W(7-i)}, {W(6-i)}")
            for i in range(4): a.I(f"v_bfi_b32 v{b0+12+i}, {sMASKLO}, {W(6-i)}, {W(5-i)}")
            for q, base in ((0, b0), (2, b0 + 4), (1, b0 + 8), (3, b0 + 12)):
                a.I(f"ds_write_b128 v2, v[{base}:{base+3}] offset:{(c * 4 + q) * CS}")

    def hop_a(self):
        a = self
        a.I(f"v_lshlrev_b32 v2, 4, {vLANE}\ns_lshl_b32 {sT0}, {sSLOT}, 14\ns_add_u32 {sT0}, {sT0}, {WS_KVT}\ns_lshl_b32 {sT1}, {sW}, 12\ns_add_u32 {sT0}, {sT0}, {sT1}")
        a.I(f"v_bfe_u32 v3, {vLANE}, 1, 1\nv_mul_u32_u24 v3, {4*PS}, v3\nv_bfe_u32 v4, {vLANE}, 2, 2\nv_mul_u32_u24 v4, {PS}, v4\nv_add_u32 v3, v3, v4")
        a.I(f"v_lshrrev_b32 v4, 4, {vLANE}\nv_lshl_add_u32 v3, v4, 4, v3\nv_and_b32 v4, 1, {vLANE}\nv_lshl_add_u32 v3, v4, 3, v3")
        a.I(f"s_lshl_b32 {sT1}, {sW}, 8\ns_add_u32 {sT1}, {sT1}, {L_UPL+512}\nv_add_u32 v3, {sT1}, v3")
        ok = a.lab("hopa_ok")
        lim = 0 if self.force_slow else self.o.get("a_limit", 48)
        if not self.force_slow and self.o.get("apath", 1):
            self.tagpoll("v2", sT0, (0, 1024, 2048, 3072), 8, sleep=1, limit=lim, ok_label=ok)
        a.I(f"v_lshrrev_b32 v2, 5, {vLANE}\nv_lshlrev_b32 v2, 14, v2\nv_bfe_u32 v4, {vLANE}, 2, 3\nv_lshl_add_u32 v2, v4, 11, v2\nv_and_b32 v4, 3, {vLANE}\nv_lshl_add_u32 v2, v4, 4, v2")
        a.I(f"s_lshl_b32 {sT0}, {sX}, 19\ns_lshl_b32 {sT1}, {sW}, 17\ns_add_u32 {sT0}, {sT0}, {sT1}\ns_lshl_b32 {sT1}, {sR}, 6\ns_add_u32 {sT0}, {sT0}, {sT1}\ns_add_u32 {sT0}, {sT0}, {WS_KVB}")
        a.I(f"s_add_u32 {sT1}, {sT0}, 32768\ns_add_u32 {sT2}, {sT0}, 65536\ns_add_u32 {sT3}, {sT0}, 98304")
        self.tagpoll("v2", [sT0, sT1, sT2, sT3], (0, 0, 0, 0), 8, sleep=2)
        a.a.L(ok)
        for j in range(4):
            a.I(f"ds_write_b64 v3, v[{8+4*j}:{9+4*j}] offset:{64*j}")
        a.I("s_waitcnt lgkmcnt(0)\ns_barrier")

    def w2_rows(self, kap_local):
        cp, i = divmod(kap_local, 7)
        base = 224 * cp
        if i < 3: starts = [base + 32 * i + 8 * g for g in range(4)]
        elif i < 6: starts = [base + 112 + 32 * (i - 3) + 8 * g for g in range(4)]
        else: starts = [base + 96, base + 104, base + 208, base + 216]
        return starts

    def w2_setup(self, vreg):
        a = self
        a.I(f"v_lshrrev_b32 {vreg}, 3, {vLANE}\nv_lshlrev_b32 {vreg}, 10, {vreg}\nv_and_b32 v5, 7, {vLANE}\nv_lshl_add_u32 {vreg}, v5, 4, {vreg}")
        a.I(f"s_lshl_b32 {sT2}, {sNT}, 7\nv_add_u32 {vreg}, {sT2}, {vreg}")
        a.I(f"s_mul_i32 {sT3}, {sW}, {448*1024}")

    def w2_load_list(self, vreg, k0=0, k1=14):
        out = []
        for k in range(k0, k1):
            for g, st in enumerate(self.w2_rows(k)):
                d = (k * 4 + g) * 4
                out.append(f"s_add_u32 {sT2}, {sT3}, {st*1024}\nbuffer_load_dwordx4 a[{d}:{d+3}], {vreg}, {SRD_W2}, {sT2} offen")
        return out

    def conv_main(self):
        a = self
        self.q_loads()
        a.I(f"v_lshlrev_b32 v146, 7, {vTID}\nv_min_u32 v147, 191, {vTID}\nv_lshlrev_b32 v147, 7, v147")
        a.I(f"s_mul_i32 s76, {sR}, 57344\ns_add_u32 s77, s76, 32768")
        w2l = [f"buffer_load_dword v160, v146, {SRD_W1}, s76 offen", f"buffer_load_dword v160, v147, {SRD_W1}, s77 offen"]
        if self.o.get("w2share_conv", 0):
            w2l += [f"buffer_load_dword v160, v146, {SRD_W2}, s76 offen", f"buffer_load_dword v160, v147, {SRD_W2}, s77 offen"]
        a.I(f"s_and_b32 {sT1}, {sW}, 1\ns_lshr_b32 {sT4}, {sW}, 1")
        a.I(f"v_and_b32 v4, 3, {vLANE}\nv_sub_u32 v4, 3, v4\nv_mul_u32_u24 v2, {CS}, v4")
        a.I(f"v_bfe_u32 v4, {vLANE}, 2, 3\nv_lshlrev_b32 v4, 3, v4\nv_sub_u32 v2, v2, v4")
        a.I(f"v_lshrrev_b32 v5, 5, {vLANE}\nv_lshl_add_u32 v2, v5, 4, v2")
        a.I(f"s_mul_i32 {sT0}, {sT1}, {4*CS}\ns_lshl_b32 {sT5}, {sT4}, 10\ns_sub_u32 {sT0}, {sT0}, {sT5}\ns_add_u32 {sT0}, {sT0}, {L_TOEP+1080}")
        a.I(f"v_add_u32 v2, {sT0}, v2")
        a.I(f"v_mul_u32_u24 v3, {PS}, v5\nv_and_b32 v4, 31, {vLANE}\nv_lshl_add_u32 v3, v4, 4, v3")
        a.I(f"s_mul_i32 {sT0}, {sT1}, {4*PS}\ns_lshl_b32 {sT5}, {sT4}, 8\ns_sub_u32 {sT0}, {sT0}, {sT5}\ns_add_u32 {sT0}, {sT0}, {L_UPL+17*16}")
        a.I(f"v_add_u32 v3, {sT0}, v3")
        for i in range(64, 96):
            a.I(f"v_mov_b32 v{i}, 0")

        def reads(tp):
            b = 96 + 16 * (tp % 3)
            boff = (15 - (tp - 1) // 2) * 16 if tp % 2 == 1 else 2 * PS + (15 - tp // 2) * 16
            a.I(f"ds_read_b64 v[{b}:{b+1}], v2 offset:{3040-32*tp}")
            a.I(f"ds_read_b64 v[{b+2}:{b+3}], v2 offset:{3048-32*tp}")
            a.I(f"ds_read_b128 v[{b+4}:{b+7}], v3 offset:{boff+512}")
            a.I(f"ds_read_b128 v[{b+8}:{b+11}], v3 offset:{boff}")
            a.I(f"ds_read_b64 v[{b+12}:{b+13}], v2 offset:{992-32*tp}")
            a.I(f"ds_read_b64 v[{b+14}:{b+15}], v2 offset:{1000-32*tp}")
        reads(0); reads(1)
        per = self.o.get("w2_per_step", 1)
        for tp in range(32):
            a.I("s_waitcnt lgkmcnt(6)" if tp + 1 < 32 else "s_waitcnt lgkmcnt(0)")
            b = 96 + 16 * (tp % 3)
            a.I(f"v_mfma_f32_32x32x16_bf16 v[80:95], v[{b}:{b+3}], v[{b+4}:{b+7}], v[80:95]")
            if tp + 2 < 32: reads(tp + 2)
            if w2l and tp % self.o.get("touch_every", 8) == 0: a.I(w2l.pop(0))
            a.I(f"v_mfma_f32_32x32x16_bf16 v[64:79], v[{b}:{b+3}], v[{b+8}:{b+11}], v[64:79]")
            a.I(f"v_mfma_f32_32x32x16_bf16 v[80:95], v[{b+12}:{b+15}], v[{b+8}:{b+11}], v[80:95]")
        for x in w2l: a.I(x)

    def conv_epilogue(self):
        a = self
        self.tags_into((144, 148, 152, 156))
        a.I("s_barrier")
        a.I(f"s_lshl_b32 {sT0}, {sW}, 13\ns_add_u32 {sT0}, {sT0}, {L_XCH}\nv_lshlrev_b32 v2, 4, {vLANE}\nv_add_u32 v3, {sT0}, v2")
        for dst in range(4):
            part, rh = dst >> 1, dst & 1
            b = 64 + 16 * part + 8 * rh
            for h in range(2):
                a.I(f"ds_write_b128 v3, v[{b+4*h}:{b+4*h+3}] offset:{dst*2048 + h*1024}")
        a.I(f"s_and_b32 {sT1}, {sW}, 1\ns_lshr_b32 {sT2}, {sW}, 1")
        a.I(f"v_and_b32 v4, 31, {vLANE}\nv_lshlrev_b32 v4, 4, v4\nv_lshrrev_b32 v5, 5, {vLANE}\nv_lshl_add_u32 v4, v5, 3, v4")
        a.I(f"s_mul_i32 {sT3}, {sT1}, {2*PS}\ns_lshl_b32 {sT4}, {sT2}, 9\ns_add_u32 {sT3}, {sT3}, {sT4}\ns_add_u32 {sT3}, {sT3}, {L_UPL+512}")
        a.I(f"v_add_u32 v4, {sT3}, v4")
        for c in range(2):
            for g in range(2):
                d = 96 + 4 * c + 2 * g
                a.I(f"ds_read_b64 v[{d}:{d+1}], v4 offset:{c*4*PS + g*PS}")
        a.I("s_waitcnt lgkmcnt(0)\ns_barrier")
        a.I(f"s_lshl_b32 {sT0}, {sW}, 11\ns_add_u32 {sT0}, {sT0}, {L_XCH}\nv_add_u32 v3, {sT0}, v2")
        for src in range(4):
            for h in range(2):
                d = 104 + 8 * src + 4 * h
                a.I(f"ds_read_b128 v[{d}:{d+3}], v3 offset:{src*8192 + h*1024}")
        a.I(f"s_lshl_b32 {sT4}, {sD0}, 16\ns_and_b32 {sT5}, {sD0}, {sMASKHI}")
        for c in range(2):
            for g in range(2):
                for h in range(2):
                    s = 96 + 4 * c + 2 * g + h
                    d = 64 + 8 * c + 4 * g + 2 * h
                    a.I(f"v_lshlrev_b32 v{d}, 16, v{s}\nv_and_b32 v{d+1}, {sMASKHI}, v{s}")
        a.I("s_waitcnt lgkmcnt(0)")
        for c in range(2):
            sd = sT4 if c == 0 else sT5
            for e in range(8):
                a.I(f"v_add_f32 v{104+8*c+e}, v{104+8*c+e}, v{104+8*(c+2)+e}")
            for e in range(8):
                a.I(f"v_fmac_f32 v{104+8*c+e}, {sd}, v{64+8*c+e}")
        for e in range(8):
            a.I(f"v_cvt_pk_bf16_f32 v{80+e}, v{104+e}, v{112+e}")
        a.I(f"v_lshrrev_b32 v4, 2, {vLANE}\nv_lshlrev_b32 v4, 16, v4\nv_and_b32 v8, 3, {vLANE}\nv_lshl_add_u32 v4, v8, 4, v4")
        a.I(f"s_lshl_b32 {sT3}, {sT2}, 21\ns_lshl_b32 {sT0}, {sT1}, 15\ns_add_u32 {sT3}, {sT3}, {sT0}")
        a.I(f"s_lshl_b32 {sT0}, {sSLOT}, 6\ns_add_u32 {sT3}, {sT3}, {sT0}\ns_add_u32 {sT0}, {sT3}, {WS_Y}")
        a.I(f"s_add_u32 {sT1}, {sT0}, {16*65536}\ns_add_u32 {sT2}, {sT0}, 16384\ns_add_u32 {sT3}, {sT1}, 16384")

        def wr():
            a.I(f"v_and_b32 v6, 31, {vLANE}\nv_lshlrev_b32 v6, 5, v6\nv_lshl_add_u32 v6, v5, 4, v6\nv_add_u32 v6, {sT5}, v6")
            a.I(f"ds_write_b128 v6, v[80:83]\nds_write_b128 v6, v[84:87] offset:1024")
        self.ctag_store(80, f"s_lshl_b32 {sT5}, {sW}, 11\ns_add_u32 {sT5}, {sT5}, {L_CT}", "v4",
                        [(sT0, 0), (sT1, 0), (sT2, 0), (sT3, 0)], False, vtmp=144, wr_addr=wr)
        a.I("s_barrier")

    def touch_setup(self):
        a = self
        a.I(f"s_lshl_b32 {sT0}, {sX}, 4\ns_lshl_b32 {sT1}, {sRH}, 3\ns_add_u32 {sT0}, {sT0}, {sT1}\ns_lshl_b32 {sT1}, {sW}, 1\ns_add_u32 {sT0}, {sT0}, {sT1}")
        a.I(f"s_mul_i32 {sT0}, {sT0}, 57344\ns_add_u32 {sT0}, {sT0}, {WS_H1}")
        a.I(f"s_lshr_b32 {sT1}, {sCC}, 1\ns_mul_i32 {sT1}, {sT1}, 7168\ns_add_u32 s75, {sT0}, {sT1}")
        a.I(f"s_and_b32 {sT2}, {sCC}, 1\ns_mul_i32 {sT2}, {sT2}, 3072")
        a.I(f"v_and_b32 v2, 31, {vLANE}\nv_lshlrev_b32 v3, 7, v2\nv_add_u32 v4, {sT2}, v3")
        a.I(f"v_add_u32 v3, {6144-24*128}, v3\nv_cmp_gt_u32 vcc, 24, v2\nv_cndmask_b32 v3, v3, v4, vcc")
        a.I(f"v_lshrrev_b32 v2, 5, {vLANE}\nv_mul_u32_u24 v2, 57344, v2\nv_add_u32 v145, v3, v2")
        a.I(f"v_lshlrev_b32 v146, 7, {vTID}\nv_min_u32 v147, 191, {vTID}\nv_lshlrev_b32 v147, 7, v147")
        a.I(f"s_mul_i32 s76, {sR}, 57344\ns_add_u32 s77, s76, 32768")
        return [f"buffer_load_dword v160, v146, {SRD_W1}, s76 offen",
                f"buffer_load_dword v160, v147, {SRD_W1}, s77 offen",
                f"buffer_load_dword v160, v145, {SRD_WS}, s75 offen"]

    def htouch(self):
        a = self
        a.I(f"s_lshl_b32 {sT0}, {sX}, 4\ns_lshl_b32 {sT1}, {sRH}, 3\ns_add_u32 {sT0}, {sT0}, {sT1}\ns_lshl_b32 {sT1}, {sW}, 1\ns_add_u32 {sT0}, {sT0}, {sT1}")
        a.I(f"s_mul_i32 {sT0}, {sT0}, 57344\ns_add_u32 {sT0}, {sT0}, {WS_H1}")
        a.I(f"s_lshr_b32 {sT1}, {sCC}, 1\ns_mul_i32 {sT1}, {sT1}, 7168\ns_add_u32 s75, {sT0}, {sT1}")
        a.I(f"s_and_b32 {sT2}, {sCC}, 1\ns_mul_i32 {sT2}, {sT2}, 3072")
        a.I(f"v_and_b32 v5, 31, {vLANE}\nv_lshlrev_b32 v6, 7, v5\nv_add_u32 v7, {sT2}, v6")
        a.I(f"v_add_u32 v6, {6144-24*128}, v6\nv_cmp_gt_u32 vcc, 24, v5\nv_cndmask_b32 v6, v6, v7, vcc")
        a.I(f"v_lshrrev_b32 v5, 5, {vLANE}\nv_mul_u32_u24 v5, 57344, v5\nv_add_u32 v6, v6, v5")
        a.I(f"buffer_load_dword v254, v6, {SRD_WS}, s75 offen")

    def w2_convert(self, extra, k0=0, k1=14):
        a = self
        a.I(f"v_lshrrev_b32 v2, 3, {vLANE}\nv_mul_u32_u24 v2, 160, v2\nv_and_b32 v3, 7, {vLANE}\nv_lshl_add_u32 v2, v3, 4, v2")
        a.I(f"s_mul_i32 {sT0}, {sW}, 10240\ns_add_u32 {sT0}, {sT0}, {L_SCR}\nv_add_u32 v2, {sT0}, v2")
        a.I(f"v_lshrrev_b32 v3, 2, {vLANE}\nv_mul_u32_u24 v3, 160, v3\nv_and_b32 v4, 3, {vLANE}\nv_lshl_add_u32 v3, v4, 3, v3\nv_add_u32 v3, {sT0}, v3")
        for k in range(k0, k1):
            buf = (k % 2) * 5120
            for g in range(4):
                d = (k * 4 + g) * 4
                a.I(f"ds_write_b128 v2, a[{d}:{d+3}] offset:{buf + g*1280}")
                if extra and g % 2 == 1: a.I(extra.pop(0))
            for aa in range(4):
                for hh in range(2):
                    ar = (k * 4 + aa) * 4 + 2 * hh
                    a.I(f"ds_read_b64_tr_b16 a[{ar}:{ar+1}], v3 offset:{buf + hh*16*160 + aa*32}")
        for x in extra: a.I(x)
        a.I("s_waitcnt lgkmcnt(0)")

    def allreduce32(self, ra, rb, tmp1, tmp2):
        a = self
        for sh in (8, 4, 2, 1):
            a.I(f"v_add_f32_dpp {ra}, {ra}, {ra} row_ror:{sh} row_mask:0xf bank_mask:0xf")
            a.I(f"v_add_f32_dpp {rb}, {rb}, {rb} row_ror:{sh} row_mask:0xf bank_mask:0xf")
        a.I(f"v_mov_b32 {tmp1}, {ra}\nv_mov_b32 {tmp2}, {rb}")
        a.I(f"v_permlane16_swap_b32 {ra}, {tmp1}\nv_permlane16_swap_b32 {rb}, {tmp2}")
        a.I(f"v_add_f32 {ra}, {ra}, {tmp1}\nv_add_f32 {rb}, {rb}, {tmp2}")

    def stats(self, xb, vs, vq):
        a = self
        a.I(f"v_add_f32 {vs}, v{xb}, v{xb+1}\nv_mul_f32 {vq}, v{xb}, v{xb}\nv_add_f32 v6, v{xb+2}, v{xb+3}\nv_mul_f32 v7, v{xb+2}, v{xb+2}")
        a.I(f"v_fmac_f32 {vq}, v{xb+1}, v{xb+1}\nv_fmac_f32 v7, v{xb+3}, v{xb+3}")
        for e in range(4, 16, 2):
            a.I(f"v_add_f32 {vs}, {vs}, v{xb+e}\nv_fmac_f32 {vq}, v{xb+e}, v{xb+e}\nv_add_f32 v6, v6, v{xb+e+1}\nv_fmac_f32 v7, v{xb+e+1}, v{xb+e+1}")
        a.I(f"v_add_f32 {vs}, {vs}, v6\nv_add_f32 {vq}, {vq}, v7")
        self.allreduce32(vs, vq, "v6", "v7")
        a.I(f"v_mul_f32 {vs}, {f32bits(1/512)}, {vs}\nv_mul_f32 {vq}, {f32bits(1/512)}, {vq}")
        a.I(f"v_fma_f32 {vq}, -{vs}, {vs}, {vq}\nv_max_f32 {vq}, 0, {vq}")

    def r_core(self, x3store):
        a = self
        self.stats(16, "v4", "v5")
        a.I(f"v_add_f32 v5, {sEPS}, v5\nv_rsq_f32 v5, v5")
        for e in range(16):
            a.I(f"v_sub_f32 v{48+e}, v{16+e}, v4")
        for e in range(16):
            a.I(f"v_mul_f32 v{48+e}, v{48+e}, v5")
        for e in range(16):
            a.I(f"v_fmac_f32 v{16+e}, v{48+e}, v{32+e}")
        for j in range(8):
            a.I(f"v_cvt_pk_bf16_f32 v{48+j}, v{16+2*j}, v{16+2*j+1}")
        for j in range(8):
            a.I(f"v_lshlrev_b32 v{16+2*j}, 16, v{48+j}\nv_and_b32 v{16+2*j+1}, {sMASKHI}, v{48+j}")
        if x3store:
            a.I(f"v_lshrrev_b32 v8, 5, {vTID}\nv_lshlrev_b32 v8, 10, v8\nv_bfe_u32 v9, {vTID}, 2, 3\nv_lshl_add_u32 v8, v9, 7, v8\nv_and_b32 v9, 3, {vTID}\nv_lshl_add_u32 v8, v9, 4, v8")
            a.I(f"s_lshl_b32 {sT0}, {sSLOT}, 13\ns_add_u32 {sT0}, {sT0}, {WS_X3}")
            self.hstore([f"buffer_store_dwordx4 v[48:51], v8, {SRD_WS}, {sT0} offen",
                         f"buffer_store_dwordx4 v[52:55], v8, {SRD_WS}, {sT0} offen offset:64"])
        else:
            for j in range(8):
                a.I(f"v_accvgpr_write_b32 a{224+j}, v{48+j}")
        self.stats(16, "v4", "v5")
        a.I(f"v_add_f32 v6, {sEPS}, v5\nv_rsq_f32 v7, v6\nv_rcp_f32 v6, v6")
        a.I(f"v_mul_f32 v6, v5, v6\nv_add_f32 v6, {sEPS}, v6\nv_rsq_f32 v6, v6\nv_mul_f32 v5, v7, v6")
        for e in range(16):
            a.I(f"v_sub_f32 v{16+e}, v{16+e}, v4")
        for e in range(16):
            a.I(f"v_mul_f32 v{16+e}, v{16+e}, v5")
        for j in range(8):
            a.I(f"v_cvt_pk_bf16_f32 v{56+j}, v{16+2*j}, v{16+2*j+1}")
        a.I(f"v_bfe_u32 v8, {vTID}, 2, 3\nv_lshlrev_b32 v8, 11, v8\nv_and_b32 v9, 3, {vTID}\nv_lshl_add_u32 v8, v9, 8, v8")
        a.I(f"v_lshrrev_b32 v9, 5, {vTID}\nv_lshl_add_u32 v8, v9, 4, v8")
        a.I(f"s_lshr_b32 {sT0}, {sR}, 1\ns_lshl_b32 {sT0}, {sT0}, 14")
        a.I(f"s_and_b32 {sT1}, {sR}, 1\ns_lshl_b32 {sT1}, {sT1}, 7\ns_add_u32 {sT0}, {sT0}, {sT1}\ns_add_u32 {sT0}, {sT0}, {sZB}")
        self.hstore([f"buffer_store_dwordx4 v[56:59], v8, {SRD_WS}, {sT0} offen",
                     f"buffer_store_dwordx4 v[60:63], v8, {SRD_WS}, {sT0} offen offset:1024"])

    def r1(self):
        a = self
        a.I(f"v_lshlrev_b32 v2, 4, {vLANE}\ns_lshl_b32 {sT0}, {sSLOT}, 14\ns_add_u32 {sT0}, {sT0}, {WS_Y}\ns_lshl_b32 {sT1}, {sW}, 12\ns_add_u32 {sT0}, {sT0}, {sT1}")
        a.I(f"v_and_b32 v3, 3, {vLANE}\nv_lshlrev_b32 v3, 11, v3\nv_lshrrev_b32 v4, 2, {vTID}\nv_bfe_u32 v4, {vLANE}, 2, 4\nv_lshl_add_u32 v3, v4, 2, v3")
        a.I(f"s_lshl_b32 {sT1}, {sW}, 8\ns_add_u32 {sT1}, {sT1}, {L_YT}\nv_add_u32 v3, {sT1}, v3")
        for j in range(8):
            a.I(f"v_accvgpr_read_b32 v{48+j}, a{224+j}")
        for j in range(8):
            a.I(f"v_lshlrev_b32 v{16+2*j}, 16, v{48+j}\nv_and_b32 v{16+2*j+1}, {sMASKHI}, v{48+j}")
        self.tagpoll("v2", sT0, (0, 1024, 2048, 3072), 64, sleep=4)
        a.stamp("y arrived")
        if self.o.get("htouch_r1", 1):
            self.htouch()
        for j in range(4):
            a.I(f"v_add_u32 v4, {64*j}, v3")
            a.I(f"ds_write2st64_b32 v4, v{64+4*j}, v{65+4*j} offset0:0 offset1:4")
        self.rowaddr("v4", "v5")
        a.I(f"v_add_u32 v4, {L_YT}, v4")
        a.I("s_waitcnt lgkmcnt(0)\ns_barrier")
        for i, off in enumerate((0, 32, 64, 96)):
            a.I(f"ds_read_b64 v[{8+2*i}:{9+2*i}], v4 offset:{off}")
        a.I("s_waitcnt lgkmcnt(0)")
        for j in range(8):
            a.I(f"v_lshlrev_b32 v{32+2*j}, 16, v{8+j}\nv_and_b32 v{32+2*j+1}, {sMASKHI}, v{8+j}")
            a.I(f"v_accvgpr_write_b32 a{232+j}, v{8+j}")
        self.r_core(False)

    def r2(self):
        a = self
        a.I(f"v_lshlrev_b32 v8, 4, {vLANE}")
        a.I(f"s_lshl_b32 {sT0}, {sSLOT}, 14\ns_add_u32 {sT0}, {sT0}, {sOB}\ns_lshl_b32 {sT1}, {sW}, 12\ns_add_u32 {sT0}, {sT0}, {sT1}")
        for j in range(8):
            a.I(f"v_accvgpr_read_b32 v{48+j}, a{224+j}\nv_accvgpr_read_b32 v{56+j}, a{232+j}")
        for j in range(8):
            a.I(f"v_lshlrev_b32 v{16+2*j}, 16, v{48+j}\nv_and_b32 v{16+2*j+1}, {sMASKHI}, v{48+j}")
            a.I(f"v_lshlrev_b32 v{32+2*j}, 16, v{56+j}\nv_and_b32 v{32+2*j+1}, {sMASKHI}, v{56+j}")
        a.I(f"s_lshl_b32 {sT5}, {sW}, 11\ns_add_u32 {sT5}, {sT5}, {L_CT}")
        a.I(f"v_lshlrev_b32 v6, 3, {vLANE}\nv_add_u32 v6, {sT5}, v6\nv_lshlrev_b32 v7, 5, {vLANE}\nv_add_u32 v7, {sT5}, v7")
        self.tagpoll("v8", sT0, (0, 1024, 2048, 3072), 64, sleep=1)
        a.stamp("o arrived")
        for j in range(4):
            a.I(f"ds_write_b64 v6, v[{64+4*j}:{65+4*j}] offset:{512*j}")
        a.I("ds_read_b128 v[64:67], v7\nds_read_b128 v[68:71], v7 offset:16\ns_waitcnt lgkmcnt(0)")
        for j in range(8):
            a.I(f"v_lshlrev_b32 v{48+2*j}, 16, v{64+j}\nv_and_b32 v{48+2*j+1}, {sMASKHI}, v{64+j}")
        for e in range(16):
            a.I(f"v_add_f32 v{16+e}, v{16+e}, v{48+e}")
        for j in range(8):
            a.I(f"v_cvt_pk_bf16_f32 v{48+j}, v{16+2*j}, v{16+2*j+1}")
        for j in range(8):
            a.I(f"v_lshlrev_b32 v{16+2*j}, 16, v{48+j}\nv_and_b32 v{16+2*j+1}, {sMASKHI}, v{48+j}")
        self.r_core(True)

    def gemm1_pre(self):
        a = self
        a.I(f"v_lshrrev_b32 v2, 4, {vLANE}\nv_lshlrev_b32 v2, 3, v2\ns_mul_i32 {sT0}, {sCC}, 224")
        for aa in range(7):
            a.I(f"buffer_load_dwordx2 v[{64+2*aa}:{65+2*aa}], v2, {SRD_B1}, {sT0} offen offset:{32*aa}")
        a.I("s_waitcnt vmcnt(0)")
        for aa in range(7):
            for rt in range(2):
                d = 8 + (aa * 2 + rt) * 4
                for h in range(2):
                    s = 64 + 2 * aa + h
                    a.I(f"v_lshlrev_b32 v{d+2*h}, 16, v{s}\nv_and_b32 v{d+2*h+1}, {sMASKHI}, v{s}")

    def gemm1(self, w2range=None):
        a = self
        ZB = 120
        if w2range and self.o.get("htouch_g1", 0):
            a.I(f"s_lshl_b32 {sT0}, {sX}, 4\ns_lshl_b32 {sT1}, {sRH}, 3\ns_add_u32 {sT0}, {sT0}, {sT1}\ns_lshl_b32 {sT1}, {sW}, 1\ns_add_u32 {sT0}, {sT0}, {sT1}")
            a.I(f"s_mul_i32 {sT0}, {sT0}, 57344\ns_add_u32 {sT0}, {sT0}, {sHB}")
            a.I(f"s_lshr_b32 {sT1}, {sCC}, 1\ns_mul_i32 {sT1}, {sT1}, 7168\ns_add_u32 s75, {sT0}, {sT1}")
            a.I(f"s_and_b32 {sT2}, {sCC}, 1\ns_mul_i32 {sT2}, {sT2}, 3072")
            a.I(f"v_and_b32 v2, 31, {vLANE}\nv_lshlrev_b32 v3, 7, v2\nv_add_u32 v4, {sT2}, v3")
            a.I(f"v_add_u32 v3, {6144-24*128}, v3\nv_cmp_gt_u32 vcc, 24, v2\nv_cndmask_b32 v3, v3, v4, vcc")
            a.I(f"v_lshrrev_b32 v2, 5, {vLANE}\nv_mul_u32_u24 v2, 57344, v2\nv_add_u32 v7, v3, v2")
        a.I(f"v_lshlrev_b32 v2, 4, {vLANE}")
        a.I(f"s_lshl_b32 {sT0}, {sRH}, 17")
        a.I(f"s_lshl_b32 {sT1}, {sW}, 15\ns_add_u32 {sT0}, {sT0}, {sT1}\ns_add_u32 {sT0}, {sT0}, {sZB}")
        a.I(f"s_add_u32 {sT1}, {sT0}, 16384")
        PD = self.o.get("g1_pd", 4)

        def zload(t):
            out = []
            for rt in range(2):
                d = ZB + (t * 2 + rt) * 4
                so = sT0 if rt == 0 else sT1
                x = f"buffer_load_dwordx4 v[{d}:{d+3}], v2, {SRD_WS}, {so} offen offset:{(t%4)*1024} sc1"
                if rt == 1 and t % 4 == 3:
                    x += f"\ns_add_u32 {sT0}, {sT0}, 4096\ns_add_u32 {sT1}, {sT1}, 4096"
                out.append(x)
            return out
        order = []
        for t in range(PD):
            for x in zload(t):
                a.I(x); order.append(('z', t))
        w2l = []
        if w2range and self.o.get("htouch_g1", 0):
            a.I(f"buffer_load_dword v254, v7, {SRD_WS}, s75 offen"); order.append(('t', 0))
        if w2range:
            self.w2_setup("v6")
            a.I(f"s_mov_b32 s73, {sT3}")
            w2l = [x.replace(sT3, "s73").replace(sT2, "s74") for x in self.w2_load_list("v6", *w2range)]
        WB = 64
        a.I(f"v_lshrrev_b32 v3, 2, {vLANE}\nv_mul_u32_u24 v3, 224, v3\nv_and_b32 v4, 3, {vLANE}\nv_lshl_add_u32 v3, v4, 3, v3\nv_add_u32 v4, 57344, v3")

        def wread(t, aa, hh):
            b = WB + 28 * (t % 2)
            base, tt = ("v3", t) if t < 8 else ("v4", t - 8)
            off = L_W1 + (32 * tt + 16 * hh) * 224 + 32 * aa
            return f"ds_read_b64_tr_b16 v[{b+4*aa+2*hh}:{b+4*aa+2*hh+1}], {base} offset:{off}"
        for aa in range(7):
            for hh in range(2): a.I(wread(0, aa, hh))
        for t in range(16):
            b = WB + 28 * (t % 2)
            for aa in range(7):
                lg = 12 if t + 1 < 16 else (7 - aa) * 2 - 2
                if aa == 0:
                    last = max(i for i, o in enumerate(order) if o == ('z', t))
                    a.I(f"s_waitcnt vmcnt({len(order) - 1 - last}) lgkmcnt({lg})")
                else:
                    a.I(f"s_waitcnt lgkmcnt({lg})")
                for rt in range(2):
                    d = 8 + (aa * 2 + rt) * 4
                    z = ZB + (t * 2 + rt) * 4
                    a.I(f"v_mfma_f32_16x16x32_bf16 v[{d}:{d+3}], v[{b+4*aa}:{b+4*aa+3}], v[{z}:{z+3}], v[{d}:{d+3}]")
                    if t + 1 < 16:
                        a.I(wread(t + 1, aa, rt))
                    if aa == 1 and t + PD < 16:
                        a.I(zload(t + PD)[rt]); order.append(('z', t + PD))
                    if aa in (3, 5) and rt == 0 and w2l:
                        a.I(w2l.pop(0)); order.append(('w', 0))
        for x in w2l: a.I(x)
        self.stamp("g1 mfma done")
        c1 = -2.0 * 0.7978845608028654 * 1.4426950408889634
        c2 = c1 * 0.044715
        a.I(f"v_mov_b32 v64, {f32bits(c2)}")
        a.I(f"s_lshl_b32 {sT0}, {sX}, 4\ns_lshl_b32 {sT1}, {sRH}, 3\ns_add_u32 {sT0}, {sT0}, {sT1}\ns_lshl_b32 {sT1}, {sW}, 1\ns_add_u32 {sT0}, {sT0}, {sT1}")
        a.I(f"s_mul_i32 {sT0}, {sT0}, 57344\ns_add_u32 {sT0}, {sT0}, {sHB}")
        a.I(f"s_lshr_b32 {sT1}, {sCC}, 1\ns_mul_i32 {sT1}, {sT1}, 7168\ns_add_u32 {sT0}, {sT0}, {sT1}")
        a.I(f"s_and_b32 {sT2}, {sCC}, 1\ns_mul_i32 {sT1}, {sT2}, 3072\ns_add_u32 {sT1}, {sT0}, {sT1}")
        a.I(f"s_lshl_b32 {sT2}, {sT2}, 3\ns_add_u32 {sT2}, {sT0}, {sT2}\ns_add_u32 {sT2}, {sT2}, 6144")
        a.I(f"s_add_u32 {sT3}, {sT1}, 57344\ns_add_u32 {sT4}, {sT2}, 57344")
        conv = []
        if w2range:
            a.I(f"v_lshrrev_b32 v5, 3, {vLANE}\nv_mul_u32_u24 v5, 160, v5\nv_and_b32 v6, 7, {vLANE}\nv_lshl_add_u32 v5, v6, 4, v5")
            a.I(f"s_mul_i32 s73, {sW}, 10240\ns_add_u32 s73, s73, {L_SCR}\nv_add_u32 v5, s73, v5")
            a.I(f"v_lshrrev_b32 v6, 2, {vLANE}\nv_mul_u32_u24 v6, 160, v6\nv_and_b32 v7, 3, {vLANE}\nv_lshl_add_u32 v6, v7, 3, v6\nv_add_u32 v6, s73, v6")
            a.I("s_waitcnt vmcnt(0)")
            for k in range(14):
                buf = (k % 2) * 5120
                c = []
                for g in range(4):
                    d = (k * 4 + g) * 4
                    c.append(f"ds_write_b128 v5, a[{d}:{d+3}] offset:{buf + g*1280}")
                for a4 in range(4):
                    for hh in range(2):
                        ar = (k * 4 + a4) * 4 + 2 * hh
                        c.append(f"ds_read_b64_tr_b16 a[{ar}:{ar+1}], v6 offset:{buf + hh*16*160 + a4*32}")
                conv.append(c)
        for aa in range(7):
            for rt in range(2):
                d = 8 + (aa * 2 + rt) * 4
                t0 = 68 + 4 * ((aa * 2 + rt) % 2)
                c = conv.pop(0) if conv else []
                grp = [[f"v_mul_f32 v{t0+j}, v{d+j}, v{d+j}" for j in range(4)],
                       [f"v_fmaak_f32 v{t0+j}, v64, v{t0+j}, {f32bits(c1)}" for j in range(4)],
                       [f"v_mul_f32 v{t0+j}, v{t0+j}, v{d+j}" for j in range(4)],
                       [f"v_exp_f32 v{t0+j}, v{t0+j}" for j in range(4)],
                       [f"v_add_f32 v{t0+j}, 1.0, v{t0+j}" for j in range(4)],
                       [f"v_rcp_f32 v{t0+j}, v{t0+j}" for j in range(4)],
                       [f"v_mul_f32 v{d+j}, v{d+j}, v{t0+j}" for j in range(4)]]
                for gi, g in enumerate(grp):
                    for x in g: a.I(x)
                    for _ in range(2):
                        if c: a.I(c.pop(0))
        st = []
        for rt in range(2):
            so1 = sT1 if rt == 0 else sT3
            so2 = sT2 if rt == 0 else sT4
            for i in range(3):
                p = 80 + (rt * 3 + i) * 4
                for h in range(2):
                    d = 8 + ((2 * i + h) * 2 + rt) * 4
                    a.I(f"v_cvt_pk_bf16_f32 v{p+2*h}, v{d}, v{d+1}\nv_cvt_pk_bf16_f32 v{p+2*h+1}, v{d+2}, v{d+3}")
                st.append(f"buffer_store_dwordx4 v[{p}:{p+3}], v2, {SRD_WS}, {so1} offen offset:{i*1024}")
            d = 8 + (6 * 2 + rt) * 4
            p = 104 + 2 * rt
            a.I(f"v_cvt_pk_bf16_f32 v{p}, v{d}, v{d+1}\nv_cvt_pk_bf16_f32 v{p+1}, v{d+2}, v{d+3}")
            st.append(f"buffer_store_dwordx2 v[{p}:{p+1}], v2, {SRD_WS}, {so2} offen")
        self.hstore(st)

    def gemm2(self, final):
        a = self
        a.I(f"v_lshlrev_b32 v2, 4, {vLANE}")
        a.I(f"s_lshl_b32 {sT0}, {sX}, 4\ns_lshl_b32 {sT1}, {sRQ}, 2\ns_add_u32 {sT0}, {sT0}, {sT1}\ns_mul_i32 {sT0}, {sT0}, 57344")
        a.I(f"s_mul_i32 {sT1}, {sW}, 14336\ns_add_u32 {sT0}, {sT0}, {sT1}\ns_add_u32 {sT0}, {sT0}, {sHB}")

        if final:
            a.I(f"v_and_b32 v4, 15, {vLANE}\nv_lshlrev_b32 v4, 10, v4\nv_lshrrev_b32 v5, 4, {vLANE}\nv_lshl_add_u32 v4, v5, 4, v4")
            a.I(f"s_lshl_b32 {sT2}, {sX}, 18\ns_lshl_b32 {sT3}, {sRQ}, 16\ns_add_u32 {sT2}, {sT2}, {sT3}\ns_lshl_b32 {sT3}, {sW}, 14\ns_add_u32 {sT2}, {sT2}, {sT3}")
            a.I(f"s_lshl_b32 {sT3}, {sNT}, 7\ns_add_u32 {sT2}, {sT2}, {sT3}\ns_add_u32 {sT2}, {sT2}, {WS_X3}")
        PD = self.o.get("g2_pd", 14)
        for idx in range(4):
            a.I(f"s_add_u32 {sT1}, {sW}, {1+idx}\ns_and_b32 {sT1}, {sT1}, 3\ns_mul_i32 {sT1}, {sT1}, 57344\ns_add_u32 s{76+idx}, {sT1}, {sT0}")

        def hload(n):
            idx, k = divmod(n, 14)
            b = 40 + 4 * (n % 42)
            x = ""
            if k % 4 == 0 and k > 0:
                x = f"s_add_u32 s{76+idx}, s{76+idx}, 4096\n"
            return x + f"buffer_load_dwordx4 v[{b}:{b+3}], v2, {SRD_WS}, s{76+idx} offen offset:{(k%4)*1024} sc1"
        for n in range(PD): a.I(hload(n))
        if final:
            a.I(f"buffer_load_dwordx4 v[208:211], v4, {SRD_WS}, {sT2} offen sc1")
            a.I(f"buffer_load_dwordx4 v[212:215], v4, {SRD_WS}, {sT2} offen offset:64 sc1")
        a.I(f"v_lshrrev_b32 v5, 4, {vLANE}\nv_lshlrev_b32 v5, 3, v5\ns_lshl_b32 {sT2}, {sNT}, 7")
        for aa in range(4):
            a.I(f"buffer_load_dwordx2 v[{216+2*aa}:{217+2*aa}], v5, {SRD_B2}, {sT2} offen offset:{32*aa}")
        extra = 6 if final else 4
        if not final:
            self.tags_into((224, 228, 232, 236))
        a.I(f"v_lshlrev_b32 v3, 4, {vLANE}")
        issued = PD
        for idx in range(4):
            acc = 8 + 16 * (idx % 2)
            for k in range(14):
                n = idx * 14 + k
                b = 40 + 4 * (n % 42)
                younger = (issued - 1 - n) + (extra if n < PD else 0)
                a.I(f"s_waitcnt vmcnt({younger})")
                for aa in range(4):
                    ar = (k * 4 + aa) * 4
                    d = acc + 4 * aa
                    c = "0" if k == 0 else f"v[{d}:{d+3}]"
                    a.I(f"v_mfma_f32_16x16x32_bf16 v[{d}:{d+3}], a[{ar}:{ar+3}], v[{b}:{b+3}], {c}")
                    if aa == 1 and issued < 56:
                        a.I(hload(issued)); issued += 1
            if idx < 3:
                a.I(f"s_add_u32 {sT1}, {sW}, {1+idx}\ns_and_b32 {sT1}, {sT1}, 3\ns_mul_i32 {sT1}, {sT1}, 12288\ns_add_u32 {sT1}, {sT1}, {L_SCR + (2-idx)*4096}")
                a.I(f"v_add_u32 v4, {sT1}, v3")
                for aa in range(4):
                    a.I(f"ds_write_b128 v4, v[{acc+4*aa}:{acc+4*aa+3}] offset:{aa*1024}")
        self.stamp("g2 mfma done")
        a.I("s_waitcnt lgkmcnt(0)\ns_barrier")
        a.I(f"s_mul_i32 {sT1}, {sW}, 12288\ns_add_u32 {sT1}, {sT1}, {L_SCR}\nv_add_u32 v4, {sT1}, v3")
        for s in range(3):
            for aa in range(4):
                d = 40 + s * 16 + aa * 4
                a.I(f"ds_read_b128 v[{d}:{d+3}], v4 offset:{s*4096 + aa*1024}")
        for aa in range(4):
            for h in range(2):
                s = 216 + 2 * aa + h
                a.I(f"v_lshlrev_b32 v{88+4*aa+2*h}, 16, v{s}\nv_and_b32 v{88+4*aa+2*h+1}, {sMASKHI}, v{s}")
        for e in range(16):
            a.I(f"v_add_f32 v{24+e}, v{24+e}, v{88+e}")
        a.I("s_waitcnt lgkmcnt(0)")
        for e in range(16):
            a.I(f"v_add_f32 v{24+e}, v{24+e}, v{40+e}\nv_add_f32 v{56+e}, v{56+e}, v{72+e}")
        for e in range(16):
            a.I(f"v_add_f32 v{24+e}, v{24+e}, v{56+e}")
        if not final:
            for j in range(8):
                a.I(f"v_cvt_pk_bf16_f32 v{40+j}, v{24+2*j}, v{24+2*j+1}")
            a.I("s_barrier")
            a.I(f"v_lshrrev_b32 v4, 4, {vLANE}\nv_lshlrev_b32 v4, 11, v4\nv_and_b32 v5, 15, {vLANE}\nv_lshl_add_u32 v4, v5, 4, v4")
            a.I(f"s_lshl_b32 {sT2}, {sX}, 19\ns_lshl_b32 {sT3}, {sRQ}, 17\ns_add_u32 {sT2}, {sT2}, {sT3}\ns_lshl_b32 {sT3}, {sW}, 15\ns_add_u32 {sT2}, {sT2}, {sT3}")
            a.I(f"s_lshl_b32 {sT3}, {sNT}, 8\ns_add_u32 {sT2}, {sT2}, {sT3}\ns_add_u32 {sT2}, {sT2}, {sOB}")
            a.I(f"s_add_u32 {sT3}, {sT2}, 8192\ns_add_u32 {sT4}, {sT2}, 16384\ns_add_u32 {sT1}, {sT2}, 24576")
            a.I(f"s_lshl_b32 {sT5}, {sW}, 11\ns_add_u32 {sT5}, {sT5}, {L_CT}")
            a.I(f"v_lshlrev_b32 v6, 5, {vLANE}\nv_add_u32 v6, {sT5}, v6")
            a.I("ds_write_b128 v6, v[40:43]\nds_write_b128 v6, v[44:47] offset:16")
            a.I(f"v_bfe_u32 v7, {vLANE}, 2, 2\nv_lshlrev_b32 v7, 9, v7\nv_lshrrev_b32 v6, 4, {vLANE}\nv_lshl_add_u32 v7, v6, 5, v7\nv_and_b32 v6, 3, {vLANE}\nv_lshl_add_u32 v7, v6, 3, v7\nv_add_u32 v7, {sT5}, v7")
            for j in range(4):
                a.I(f"ds_read_b64 v[{224+4*j}:{225+4*j}], v7 offset:{128*j}")
            a.I("s_waitcnt lgkmcnt(0)")
            self.hstore([f"buffer_store_dwordx4 v[{224+4*j}:{227+4*j}], v4, {SRD_WS}, {(sT2, sT3, sT4, sT1)[j]} offen" for j in range(4)])
        else:
            for j in range(8):
                a.I(f"v_cvt_pk_bf16_f32 v{40+j}, v{24+2*j}, v{24+2*j+1}")
            for j in range(8):
                a.I(f"v_lshlrev_b32 v{24+2*j}, 16, v{40+j}\nv_and_b32 v{24+2*j+1}, {sMASKHI}, v{40+j}")
                a.I(f"v_lshlrev_b32 v{56+2*j}, 16, v{208+j}\nv_and_b32 v{56+2*j+1}, {sMASKHI}, v{208+j}")
            for e in range(16):
                a.I(f"v_add_f32 v{24+e}, v{24+e}, v{56+e}")
            for j in range(8):
                a.I(f"v_cvt_pk_bf16_f32 v{40+j}, v{24+2*j}, v{24+2*j+1}")
            a.I(f"v_and_b32 v4, 15, {vLANE}\nv_lshlrev_b32 v4, 10, v4\nv_lshrrev_b32 v5, 4, {vLANE}\nv_lshl_add_u32 v4, v5, 3, v4")
            a.I(f"s_lshl_b32 {sT2}, {sX}, 18\ns_lshl_b32 {sT3}, {sRQ}, 16\ns_add_u32 {sT2}, {sT2}, {sT3}\ns_lshl_b32 {sT3}, {sW}, 14\ns_add_u32 {sT2}, {sT2}, {sT3}")
            a.I(f"s_lshl_b32 {sT3}, {sNT}, 7\ns_add_u32 {sT2}, {sT2}, {sT3}")
            for aa in range(4):
                a.I(f"buffer_store_dwordx2 v[{40+2*aa}:{41+2*aa}], v4, {SRD_OUT}, {sT2} offen offset:{32*aa}")

    def build(self):
        a = self
        self.stamps = []
        a.prologue()
        self.nearly = 0
        a.I("s_waitcnt lgkmcnt(0)")
        a.I(f"s_and_b32 {sT}, {sT}, 0xfffffff0\ns_add_u32 {sT}, {sT}, 0x9e3779b0")
        a.I(f"s_mul_i32 {sTH}, {sT}, 0x85ebca6b\ns_add_u32 {sTH}, {sTH}, 0xc2b2ae35")
        ap = 1 if self.o.get("apath", 1) else 0
        a.p0_compute(ap)
        a.stamp("p0 computed")
        a.other_loads()
        a.I(f"s_lshl_b32 {sT0}, {sSLOT}, 2\ns_add_u32 {sT0}, {sT0}, {WS_FLAGS + HOP_REG * 0x400}")
        a.I(f"s_or_b32 {sT1}, {sT}, {sXCC}\nv_mov_b32 v6, {sT1}\ns_mov_b64 exec, 1")
        a.I(f"buffer_store_dword v6, off, {SRD_WS}, {sT0} sc1\ns_mov_b64 exec, -1")
        a.I("s_waitcnt vmcnt(1)")
        a.toeplitz_build()
        a.stamp("toeplitz")
        a.maybe_stop(1)
        a.hop_a()
        a.I(f"s_xor_b32 {sTH}, {sTH}, 0x11111111")
        a.stamp("u loaded")
        a.conv_main()
        a.stamp("conv main")
        a.conv_epilogue()
        a.stamp("y stored")
        a.maybe_stop(2)
        K1 = self.o.get("w2k1", 6)
        a.w1_dma_setup()
        for x in a.w1_dma_list(): a.I(x)
        if not self.o.get("w2share_conv", 0):
            a.I(f"v_lshlrev_b32 v146, 7, {vTID}\nv_min_u32 v147, 191, {vTID}\nv_lshlrev_b32 v147, 7, v147")
            a.I(f"s_mul_i32 s76, {sR}, 57344\ns_add_u32 s77, s76, 32768")
            a.I(f"buffer_load_dword v160, v146, {SRD_W2}, s76 offen\nbuffer_load_dword v160, v147, {SRD_W2}, s77 offen")
        a.stamp("bulk issued")
        a.I(f"s_lshl_b32 {sT5}, {sX}, 5")
        a.poll(HOP_REG, sT5, 32, purity=True)
        a.I(f"s_lshl_b32 {sT0}, {sX}, 18\ns_add_u32 {sZB}, {sT0}, {WS_Z1}\ns_mov_b32 {sOB}, {WS_O}\ns_mov_b32 {sHB}, {WS_H1}")
        a.I(f"s_lshl_b32 {sT0}, {sX}, 19\ns_add_u32 {sT0}, {sT0}, {WS_KVT}\ns_cmp_eq_u32 {sPURE}, 1\ns_cmov_b32 {sZB}, {sT0}\ns_cmov_b32 {sOB}, {WS_Y}")
        a.I("s_waitcnt vmcnt(0)")
        a.I("s_barrier")
        a.r1()
        skip = a.lab("ep")
        a.I(f"s_or_b32 {sT0}, {sSLOT}, {sW}\ns_cmp_lg_u32 {sT0}, 0\ns_cbranch_scc1 {skip}")
        a.I(f"v_mov_b32 v2, {sT}\ns_mov_b64 exec, 1\nbuffer_store_dword v2, off, {SRD_WS}, 0 sc1\ns_mov_b64 exec, -1")
        a.a.L(skip)
        a.signal(HOP_C1)
        a.I(f"s_xor_b32 {sTH}, {sTH}, 0x33333333")
        a.stamp("r1 done")
        a.maybe_stop(3)
        a.w2_setup("v144")
        for x in a.w2_load_list("v144", 0, K1): a.I(x)
        a.stamp("w2a issued")
        for layer in range(2):
            hopc = HOP_C1 if layer == 0 else HOP_C2
            hopd = HOP_D1 if layer == 0 else HOP_D2
            a.gemm1_pre()
            a.I(f"s_lshl_b32 {sT5}, {sX}, 5\ns_lshl_b32 {sT4}, {sRH}, 4\ns_add_u32 {sT5}, {sT5}, {sT4}")
            a.poll(hopc, sT5, 16)
            a.stamp("c polled")
            a.gemm1((K1, 14) if layer == 0 else None)
            a.signal(hopd)
            a.stamp("g1 done")
            a.maybe_stop(4 + 3 * layer)
            a.I(f"s_lshl_b32 {sT5}, {sX}, 5\ns_lshl_b32 {sT4}, {sRH}, 4\ns_add_u32 {sT5}, {sT5}, {sT4}")
            a.poll(hopd, sT5, 16)
            a.stamp("d polled")
            a.gemm2(layer == 1)
            if layer == 0:
                a.stamp("g2 done")
                a.maybe_stop(5)
                a.I(f"s_cmp_eq_u32 {sPURE}, 1\ns_cbranch_scc1 L_keepbuf\ns_add_u32 {sZB}, {sZB}, {WS_Z3 - WS_Z1}\ns_mov_b32 {sHB}, {WS_H3}")
                a.a.L("L_keepbuf")
                a.r2()
                a.signal(HOP_C2)
                a.stamp("r2 done")
                a.maybe_stop(6)
        a.a.L("L_end")
        if self.prof:
            a.I("s_waitcnt vmcnt(0)")
            a.stamp("end")
            skip = a.lab("pf")
            a.I(f"s_cmp_lg_u32 {sW}, 0\ns_cbranch_scc1 {skip}")
            a.I(f"v_writelane_b32 v255, {sPURE}, 62")
            a.I(f"v_lshlrev_b32 v2, 2, {vLANE}\ns_lshl_b32 {sT0}, {sSLOT}, 8\ns_add_u32 {sT0}, {sT0}, {WS_PROF}")
            a.I(f"buffer_store_dword v255, v2, {SRD_WS}, {sT0} offen")
            if self.o.get("dbg"):
                a.I("s_mov_b32 s64, s88\ns_mov_b32 s65, s89\ns_mov_b32 s66, 256\ns_mov_b32 s67, 0x20000")
                a.I("s_memrealtime s[0:1]\ns_waitcnt lgkmcnt(0)")
                a.I("v_readlane_b32 s68, v255, 63\ns_not_b32 s68, s68")
                a.I("v_mov_b32 v3, s68\nv_mov_b32 v4, s0\ns_mov_b64 exec, 1")
                a.I("buffer_atomic_umax v3, off, s[64:67], 0\nbuffer_atomic_umax v4, off, s[64:67], 0 offset:4\ns_mov_b64 exec, -1")
                sk2 = a.lab("dbg")
                a.I(f"s_cmp_lg_u32 {sSLOT}, {self.o.get('dbgslot', 37)}\ns_cbranch_scc1 {sk2}")
                sel = self.o["dbgsel"]
                a.I("v_readlane_b32 s69, v255, 0")
                for i, st in enumerate(sel):
                    a.I(f"v_readlane_b32 s68, v255, {st}\ns_sub_u32 s68, s68, s69\nv_mov_b32 v3, s68\ns_mov_b64 exec, 1")
                    a.I(f"buffer_store_dword v3, off, s[64:67], 0 offset:{8+4*i}\ns_mov_b64 exec, -1")
                a.a.L(sk2)
            a.a.L(skip)
        if self.o.get("fixed_us"):
            a.I("s_waitcnt vmcnt(0)\nv_readfirstlane_b32 s3, v253")
            a.a.L("L_fix")
            a.I(f"s_memrealtime s[86:87]\ns_waitcnt lgkmcnt(0)\ns_sub_u32 s86, s86, s3\ns_cmp_lt_u32 s86, {self.o.get('fixed_us', 0) * 100}\ns_cbranch_scc1 L_fix")
        a.a.L("L_exit")
        a.I("s_endpgm")
        a.a.L("L_codeend")
        body = a.a.finish()
        hdr = f"""; Fused persistent kernel: conv (MFMA Toeplitz) + 2x (LN, LN, MLP) with in-launch hand-offs
; @launch grid=(256,1,1) block=(256,1,1) lds={LDS_BYTES}
.amdgcn_target "amdgcn-amd-amdhsa--gfx950"
.text
.globl {NAME}
.p2align 8
.type {NAME},@function
{NAME}:
"""
        ftr = f""".section .rodata,"a"
.p2align 6
.amdhsa_kernel {NAME}
  .amdhsa_next_free_vgpr 512
  .amdhsa_next_free_sgpr 102
  .amdhsa_accum_offset 256
  .amdhsa_group_segment_fixed_size 0
  .amdhsa_kernarg_size 112
  .amdhsa_user_sgpr_count 2
  .amdhsa_user_sgpr_kernarg_segment_ptr 1
  .amdhsa_system_sgpr_workgroup_id_x 1
.end_amdhsa_kernel
"""
        return hdr + body + ftr


if __name__ == "__main__":
    import argparse
    ap = argparse.ArgumentParser()
    ap.add_argument("--stop", type=int, default=99)
    ap.add_argument("--prof", action="store_true")
    ap.add_argument("--slow", action="store_true")
    ap.add_argument("--opt", action="append", default=[])
    ap.add_argument("-o", default="k.s")
    args = ap.parse_args()
    opts = {}
    for o in args.opt:
        k, v = o.split("="); opts[k] = int(v)
    if opts.get("dbg"):
        opts["dbgsel"] = [3, 4, 6, 7, 8, 9, 10, 12, 14, 16, 18, 19, 23, 25]
    g = Gen(stop=args.stop, prof=args.prof, force_slow=args.slow, opts=opts)
    txt = g.build()
    open(args.o, "w").write(txt)
    print("lines", txt.count("\n"), "nop insertions", g.a.n_nops)
    if args.prof: open(args.o + ".stamps", "w").write(",".join(g.stamps))
```

```python
import sys, struct
from asmlib import Asm

NAME = "interleave_layers__ssm_conv_h3__mixer_channel_mlp__prompt_kernel"

WS_FLAGS = 0x1000
WS_PROF = 0x8000
WS_KVT = 0x200000
WS_Y = 0x600000
WS_O = 0xA00000
WS_Z1 = 0xE00000
WS_Z3 = 0x1000000
WS_X3 = 0x1200000
WS_H1 = 0x1400000
WS_H3 = 0x1C00000
WS_KVB = 0x2400000
WS_SIZE = 0x2800000
HOP_REG, HOP_C1, HOP_D1, HOP_C2, HOP_D2 = range(5)

L_W1 = 0
L_CR = 114688
CS = 4160
L_TOEP = L_CR
L_UPL = L_CR + 2 * 4 * CS
PS = 1536
L_XCH = L_CR
L_SCR = L_CR
L_YT = L_CR + 40960
L_P0T = 0
L_CT = L_CR + 32768
LDS_BYTES = 163840

sX, sR, sW = "s4", "s5", "s6"
SRD_Q, SRD_K, SRD_V, SRD_H = "s[8:11]", "s[12:15]", "s[16:19]", "s[20:23]"
SRD_W1, SRD_W2, SRD_WS, SRD_OUT = "s[24:27]", "s[28:31]", "s[32:35]", "s[36:39]"
SRD_SK, SRD_B1, SRD_B2 = "s[40:43]", "s[44:47]", "s[48:51]"
sSLOT, sD0, sZB, sC4096, sSPIN = "s52", "s53", "s54", "s55", "s56"
sT0, sT1, sT2, sT3, sT4, sT5 = "s57", "s58", "s59", "s60", "s61", "s62"
sMASKLO = "s63"
sM0, sM1, sM2, sM3 = "s[64:65]", "s[66:67]", "s[68:69]", "s[70:71]"
sHB = "s72"
sW2B, sW2L, sW2T = "s73", "s74", "s75"
sOB, sXB = "s84", "s85"
sMASKHI = "s92"
sRH, sCC, sRQ, sNT = "s93", "s94", "s95", "s96"
sEPS = "s97"
sT, sTH, sTAG = "s98", "s99", "s[98:99]"
sPURE, sXCC = "s100", "s101"
sKQ = "s86"

vTID, vLANE = "v0", "v1"
vW2D = "v248"
vW2T = ["v249", "v250", "v251", "v252"]
vDUMMY = "v254"


def f32bits(x):
    return "0x%08x" % struct.unpack("<I", struct.pack("<f", x))[0]


class Track:
    def __init__(self, cap):
        self.ops = []; self.done = 0; self.cap = cap

    def issue(self, tag=None):
        self.ops.append(tag)

    def need(self, *tags):
        idx = [i for i, t in enumerate(self.ops) if t in tags]
        if not idx: return None
        last = max(idx)
        if last < self.done: return None
        n = min(len(self.ops) - 1 - last, self.cap)
        self.done = max(self.done, len(self.ops) - n)
        return n

    def drain(self):
        self.done = len(self.ops)


class Gen:
    def __init__(self, stop=99, prof=False, force_slow=False, opts=None):
        self.a = Asm()
        self.stop, self.prof, self.force_slow = stop, prof, force_slow
        self.nlabel = 0; self.nstamp = 0
        self.o = opts or {}
        self.vm = Track(63); self.lg = Track(15)

    def lab(self, base):
        self.nlabel += 1
        return f"L_{base}_{self.nlabel}"

    def I(self, s): self.a.I(s)

    def VM(self, s, tag=None):
        self.a.I(s); self.vm.issue(tag)

    def LG(self, s, tag=None):
        self.a.I(s); self.lg.issue(tag)

    def wait(self, vm=(), lg=()):
        n = self.vm.need(*vm) if vm else None
        m = self.lg.need(*lg) if lg else None
        parts = []
        if n is not None: parts.append(f"vmcnt({n})")
        if m is not None: parts.append(f"lgkmcnt({m})")
        if parts: self.I("s_waitcnt " + " ".join(parts))

    def drain(self, vm=True, lg=True):
        parts = []
        if vm: parts.append("vmcnt(0)"); self.vm.drain()
        if lg: parts.append("lgkmcnt(0)"); self.lg.drain()
        self.I("s_waitcnt " + " ".join(parts))

    def stamp(self, name):
        if not self.prof: return
        i = self.nstamp; self.nstamp += 1
        self.a.C(f"stamp {i}: {name}")
        self.I(f"s_memtime s[0:1]\ns_waitcnt lgkmcnt(0)\nv_writelane_b32 v255, s0, {i}")
        self.lg.drain()
        self.stamps.append(name)

    def hstore(self, instrs, local=True, tag=None):
        a = self
        if local is False or local == "plain":
            for i in instrs: a.VM(i + (" sc1" if local is False else ""), tag)
            return
        lp = a.lab("stp"); ld = a.lab("std")
        a.I(f"s_cmp_eq_u32 {sPURE}, 1\ns_cbranch_scc1 {lp}")
        for i in instrs: a.I(i + " sc1")
        a.I(f"s_branch {ld}")
        a.a.L(lp)
        for i in instrs: a.VM(i, tag)
        a.a.L(ld)

    def signal(self, hop):
        a = self
        skip = a.lab("sig")
        a.drain()
        a.I("s_barrier")
        a.I(f"s_cmp_lg_u32 {sW}, 0\ns_cbranch_scc1 {skip}")
        a.I(f"s_lshl_b32 {sT0}, {sSLOT}, 2\ns_add_u32 {sT0}, {sT0}, {WS_FLAGS + hop * 0x400}")
        a.I(f"v_mov_b32 v2, {sT}\ns_mov_b64 exec, 1")
        lp = a.lab("stp"); ld = a.lab("std")
        st = f"buffer_store_dword v2, off, {SRD_WS}, {sT0}"
        a.I(f"s_cmp_eq_u32 {sPURE}, 1\ns_cbranch_scc1 {lp}\n{st} sc1\ns_branch {ld}")
        a.a.L(lp); a.I(st); a.a.L(ld)
        a.I("s_mov_b64 exec, -1")
        a.a.L(skip)
        self.flag_pending = True

    def poll(self, hop, first_slot_sgpr, n, purity=False):
        a = self
        loop = a.lab("poll"); done = a.lab("polld")
        a.I(f"s_lshl_b32 {sT0}, {first_slot_sgpr}, 2\ns_add_u32 {sT0}, {sT0}, {WS_FLAGS + hop * 0x400}")
        a.I(f"v_min_u32 v2, {n - 1}, {vLANE}\nv_lshlrev_b32 v2, 2, v2")
        a.I(f"s_mov_b32 {sSPIN}, 0x40000")
        a.a.L(loop)
        a.I(f"buffer_load_dword v3, v2, {SRD_WS}, {sT0} offen sc1")
        a.I("s_waitcnt vmcnt(0)")
        if purity:
            a.I(f"v_and_b32 v4, -16, v3\nv_cmp_ne_u32 vcc, {sT}, v4")
        else:
            a.I(f"v_cmp_ne_u32 vcc, {sT}, v3")
        a.I(f"s_cbranch_vccz {done}")
        a.I(f"s_sub_u32 {sSPIN}, {sSPIN}, 1\ns_cbranch_scc1 {done}")
        a.I(f"s_sleep 1\ns_branch {loop}")
        a.a.L(done)
        self.vm.drain(); self.flag_pending = False
        if purity:
            a.I(f"v_and_b32 v4, 15, v3\nv_cmp_ne_u32 vcc, {sXCC}, v4")
            a.I(f"s_cmp_eq_u64 vcc, 0\ns_cselect_b32 {sPURE}, 1, 0")
            if self.force_slow: a.I(f"s_mov_b32 {sPURE}, 0")

    def tagpoll(self, vaddr, soff, offs, dst, sleep=2, limit=0x20000, ok_label=None):
        a = self
        loop = a.lab("tp"); done = ok_label or a.lab("tpd"); out = a.lab("tpo")
        so = soff if isinstance(soff, (list, tuple)) else [soff] * 4
        a.I(f"s_mov_b32 {sSPIN}, {limit}")
        a.a.L(loop)
        for j in range(4):
            a.I(f"buffer_load_dwordx4 v[{dst+4*j}:{dst+4*j+3}], {vaddr}, {SRD_WS}, {so[j]} offen offset:{offs[j]} sc1")
        a.I("s_waitcnt vmcnt(0)")
        ms = (sM0, sM1, sM2, sM3)
        for j in range(4):
            a.I(f"v_cmp_ne_u64 {ms[j]}, {sTAG}, v[{dst+4*j+2}:{dst+4*j+3}]")
        a.I(f"s_or_b64 {sM0}, {sM0}, {sM1}\ns_or_b64 {sM2}, {sM2}, {sM3}\ns_or_b64 {sM0}, {sM0}, {sM2}")
        a.I(f"s_cbranch_scc0 {done}")
        a.I(f"s_sub_u32 {sSPIN}, {sSPIN}, 1\ns_cbranch_scc1 {out}")
        a.I(f"s_sleep {sleep}\ns_branch {loop}")
        a.a.L(out)
        if ok_label is None: a.a.L(done)
        self.vm.drain()

    def tags_into(self, quads):
        for q in quads:
            self.I(f"v_mov_b32 v{q+2}, {sT}\nv_mov_b32 v{q+3}, {sTH}")

    def ctag_read(self, vtmp, base_sgpr, offs=(0, 512, 1024, 1536), vaddr=None):
        a = self
        if vaddr is None:
            a.I(f"v_lshlrev_b32 v7, 3, {vLANE}\nv_add_u32 v7, {base_sgpr}, v7"); vaddr = "v7"
        for j in range(4):
            a.LG(f"ds_read_b64 v[{vtmp+4*j}:{vtmp+4*j+1}], {vaddr} offset:{offs[j]}", "ct")
        a.wait(lg=("ct",))

    def maybe_stop(self, k):
        if self.stop == k: self.I("s_branch L_end")

    def prologue(self):
        a = self
        a.I("s_cmp_ge_u32 s2, 256\ns_cbranch_scc1 L_exit")
        a.I("s_getpc_b64 s[92:93]")
        a.a.L("L_pc")
        a.I("s_lshr_b32 s3, s2, 3\ns_lshl_b32 s3, s3, 11\nv_and_b32 v2, 15, v0\nv_lshlrev_b32 v2, 7, v2\nv_add_u32 v2, s3, v2")
        a.I("v_min_u32 v2, L_codeend-L_pc-4, v2\nv_and_b32 v2, -4, v2")
        a.VM(f"global_load_dword {vDUMMY}, v2, s[92:93]")
        if self.o.get("fixed_us"):
            a.I("s_memrealtime s[86:87]\ns_waitcnt lgkmcnt(0)\ns_mov_b32 s3, s86\nv_mov_b32 v253, s3")
        a.I("s_load_dwordx16 s[64:79], s[0:1], 0\ns_load_dwordx8 s[80:87], s[0:1], 64\ns_load_dwordx4 s[88:91], s[0:1], 96")
        if self.prof:
            a.I("v_mov_b32 v255, 0")
            a.I("s_memrealtime s[0:1]\ns_waitcnt lgkmcnt(0)\nv_writelane_b32 v255, s0, 63")
            a.stamp("start")
        a.I(f"s_and_b32 {sX}, s2, 7\ns_lshr_b32 {sR}, s2, 3")
        a.I(f"v_lshrrev_b32 v2, 6, v0\nv_and_b32 {vLANE}, 63, v0")
        a.I(f"v_readfirstlane_b32 {sW}, v2")
        a.I(f"s_lshl_b32 {sSLOT}, {sX}, 5\ns_add_u32 {sSLOT}, {sSLOT}, {sR}")
        a.I(f"s_mov_b32 {sC4096}, 4096\ns_mov_b32 {sMASKLO}, 0xffff\ns_mov_b32 {sMASKHI}, 0xffff0000")
        a.I(f"s_mov_b32 {sEPS}, {f32bits(1e-5)}")
        a.I(f"s_lshr_b32 {sRH}, {sR}, 4\ns_and_b32 {sCC}, {sR}, 15")
        a.I(f"s_lshr_b32 {sRQ}, {sR}, 3\ns_and_b32 {sNT}, {sR}, 7")
        a.I(f"s_getreg_b32 {sXCC}, hwreg(HW_REG_XCC_ID)\ns_and_b32 {sXCC}, {sXCC}, 15\ns_mov_b32 {sPURE}, 0")
        a.I(f"v_and_b32 v2, 31, {vTID}\nv_lshrrev_b32 v3, 5, {vTID}")
        a.I(f"s_lshl_b32 {sT0}, {sR}, 16\ns_lshl_b32 {sT1}, {sX}, 7\ns_add_u32 {sT0}, {sT0}, {sT1}")
        a.I(f"v_lshlrev_b32 v4, 13, v3\nv_lshl_add_u32 v4, v2, 2, v4\nv_add_u32 v4, {sT0}, v4")
        a.I("v_subrev_u32 v5, 3072, v4\nv_cmp_gt_u32 vcc, 1024, v4\nv_mov_b32 v6, 0x40000000\nv_cndmask_b32 v5, v5, v6, vcc")
        a.I(f"s_lshl_b32 {sT2}, {sX}, 9\nv_lshlrev_b32 v6, 4, v2")
        a.I("s_waitcnt lgkmcnt(0)")

        def srd(n, lo, size):
            b = int(n[2:n.index(":")])
            a.I(f"s_mov_b32 s{b}, s{lo}\ns_mov_b32 s{b+1}, s{lo+1}\ns_mov_b32 s{b+2}, {size}\ns_mov_b32 s{b+3}, 0x20000")
        srd(SRD_K, 66, 2097152); srd(SRD_V, 68, 2097152); srd(SRD_SK, 70, 4096)
        for j in range(3):
            a.VM(f"buffer_load_dword v{8+j}, v5, {SRD_K}, 0 offen offset:{j*1024}", "kv")
        for j in range(8):
            so = "0" if j < 4 else sC4096
            a.VM(f"buffer_load_dword v{11+j}, v4, {SRD_K}, {so} offen offset:{(j%4)*1024}", "kv")
        for j in range(8):
            so = "0" if j < 4 else sC4096
            a.VM(f"buffer_load_dword v{20+j}, v4, {SRD_V}, {so} offen offset:{(j%4)*1024}", "kv")
        a.VM(f"buffer_load_dwordx4 v[28:31], v6, {SRD_SK}, {sT2} offen", "kv")
        a.I(f"s_load_dword {sT}, s[90:91], 0")
        a.I(f"s_lshl_b32 {sT0}, {sX}, 7\ns_lshl_b32 {sT1}, {sR}, 2\ns_add_u32 {sT0}, {sT0}, {sT1}")
        a.I(f"s_load_dword {sD0}, s[74:75], {sT0}")
        srd(SRD_WS, 90, WS_SIZE)
        a.I(f"v_min_u32 v37, 127, {vTID}\nv_lshlrev_b32 v37, 7, v37\ns_lshl_b32 {sT0}, {sSLOT}, 14\ns_add_u32 {sT0}, {sT0}, {WS_KVT}")
        a.VM(f"buffer_load_dword {vDUMMY}, v37, {SRD_WS}, {sT0} offen")
        srd(SRD_H, 72, 2097152); srd(SRD_Q, 64, 2097152)
        if self.o.get("ssm_early", 1): self.ssm_loads()
        srd(SRD_W1, 78, 512 * 1792 * 2); srd(SRD_B1, 80, 1792 * 2); srd(SRD_W2, 82, 1792 * 512 * 2)
        srd(SRD_B2, 84, 1024); srd(SRD_OUT, 86, 2097152)
        a.I(f"s_add_u32 {sKQ}, {sW}, {sNT}\ns_and_b32 {sKQ}, {sKQ}, 3" if self.o.get("kqrot", 1) else f"s_mov_b32 {sKQ}, {sW}")
        a.I("s_waitcnt lgkmcnt(0)")
        a.I(f"s_and_b32 {sT}, {sT}, 0xfffffff0\ns_add_u32 {sT}, {sT}, 0x9e3779b0")
        a.I(f"s_mul_i32 {sTH}, {sT}, 0x85ebca6b\ns_add_u32 {sTH}, {sTH}, 0xc2b2ae35")

    def rowaddr(self, vd, vt):
        a = self
        a.I(f"v_lshrrev_b32 {vd}, 5, {vTID}\nv_lshlrev_b32 {vd}, 10, {vd}")
        a.I(f"v_bfe_u32 {vt}, {vTID}, 2, 3\nv_lshl_add_u32 {vd}, {vt}, 7, {vd}")
        a.I(f"v_and_b32 {vt}, 3, {vTID}\nv_lshl_add_u32 {vd}, {vt}, 3, {vd}")

    def p0(self):
        a = self
        self.tags_into((104, 108, 112, 116))
        a.I(f"v_lshrrev_b32 v4, 2, {vLANE}\nv_lshlrev_b32 v4, 14, v4\nv_and_b32 v5, 3, {vLANE}\nv_lshl_add_u32 v4, v5, 4, v4")
        a.I(f"s_lshl_b32 {sT0}, {sX}, 19\ns_lshl_b32 {sT1}, {sR}, 9\ns_add_u32 {sT0}, {sT0}, {sT1}\ns_lshl_b32 {sT1}, {sW}, 7\ns_add_u32 {sT0}, {sT0}, {sT1}")
        a.I(f"s_add_u32 {sT0}, {sT0}, {WS_KVT}\ns_add_u32 {sT1}, {sT0}, {16*16384}")
        a.I(f"v_lshlrev_b32 v5, 4, {vLANE}\ns_lshl_b32 {sT2}, {sSLOT}, 14\ns_lshl_b32 {sT3}, {sW}, 12\ns_add_u32 {sT2}, {sT2}, {sT3}\ns_add_u32 {sT2}, {sT2}, {WS_KVB}")
        a.I(f"s_lshl_b32 {sT5}, {sW}, 11\ns_add_u32 {sT5}, {sT5}, {L_P0T}")
        a.I(f"v_lshlrev_b32 v6, 5, {vLANE}\nv_add_u32 v6, {sT5}, v6")
        a.stamp("pre kv")
        a.wait(vm=("kv",))
        a.stamp("kv arrived")
        a.I(f"v_lshlrev_b32 v56, 16, v28\nv_lshlrev_b32 v57, 16, v30\nv_and_b32 v58, {sMASKHI}, v28\nv_and_b32 v59, {sMASKHI}, v30")
        a.I(f"v_lshlrev_b32 v60, 16, v29\nv_lshlrev_b32 v61, 16, v31\nv_and_b32 v62, {sMASKHI}, v29\nv_and_b32 v63, {sMASKHI}, v31")
        for j in range(11):
            a.I(f"v_lshlrev_b32 v{64+2*j}, 16, v{8+j}\nv_and_b32 v{65+2*j}, {sMASKHI}, v{8+j}")
        P = lambda r: f"v[{r}:{r+1}]"
        for j in range(8):
            a.I(f"v_pk_mul_f32 {P(88+2*j)}, {P(64+2*(j+3))}, {P(56)}")
        for i in range(1, 4):
            for j in range(8):
                a.I(f"v_pk_fma_f32 {P(88+2*j)}, {P(64+2*(j+3-i))}, {P(56+2*i)}, {P(88+2*j)}")
        for j in range(8):
            a.I(f"v_lshlrev_b32 v{64+2*j}, 16, v{20+j}\nv_and_b32 v{65+2*j}, {sMASKHI}, v{20+j}")
        for j in range(8):
            a.I(f"v_pk_mul_f32 {P(88+2*j)}, {P(88+2*j)}, {P(64+2*j)}")
        for c in range(2):
            for j in range(4):
                a.I(f"v_cvt_pk_bf16_f32 v{64+4*c+j}, v{88+4*j+c}, v{88+4*j+2+c}")
        a.LG("ds_write_b128 v6, v[64:67]"); a.LG("ds_write_b128 v6, v[68:71] offset:16")
        self.ctag_read(104, sT5)
        so = [(sT0, 0), (sT1, 0), (sT0, 64), (sT1, 64)]
        for j in range(4):
            a.VM(f"buffer_store_dwordx4 v[{104+4*j}:{107+4*j}], v4, {SRD_WS}, {so[j][0]} offen offset:{so[j][1]}")
        for j in range(4):
            a.VM(f"buffer_store_dwordx4 v[{104+4*j}:{107+4*j}], v5, {SRD_WS}, {sT2} offen offset:{1024*j} sc1")

    def ssm_loads(self):
        a = self
        a.I(f"v_lshlrev_b32 v6, 4, {vTID}\nv_sub_u32 v7, 4080, v6\nv_sub_u32 v6, 4064, v6")
        a.I(f"v_cmp_eq_u32 vcc, 255, {vTID}\nv_mov_b32 v32, 0x40000000\nv_cndmask_b32 v6, v6, v32, vcc")
        a.I(f"s_lshl_b32 {sT0}, {sX}, 18\ns_lshl_b32 {sT1}, {sR}, 13\ns_add_u32 {sT0}, {sT0}, {sT1}\ns_add_u32 {sT1}, {sT0}, 4096")
        a.VM(f"buffer_load_dwordx4 v[40:43], v6, {SRD_H}, {sT0} offen", "ssm")
        a.VM(f"buffer_load_dwordx4 v[44:47], v7, {SRD_H}, {sT0} offen", "ssm")
        a.VM(f"buffer_load_dwordx4 v[48:51], v6, {SRD_H}, {sT1} offen", "ssm")
        a.VM(f"buffer_load_dwordx4 v[52:55], v7, {SRD_H}, {sT1} offen", "ssm")

    def toeplitz_zero(self):
        a = self
        a.I("v_mov_b32 v56, 0\nv_mov_b32 v57, 0\nv_mov_b32 v58, 0\nv_mov_b32 v59, 0")
        a.I(f"v_lshrrev_b32 v2, 5, {vTID}\nv_mul_u32_u24 v2, {PS}, v2\nv_and_b32 v3, 31, {vTID}\nv_lshl_add_u32 v2, v3, 4, v2\nv_add_u32 v2, {L_UPL}, v2")
        a.LG("ds_write_b128 v2, v[56:59]")
        a.I(f"v_bfe_u32 v2, {vLANE}, 2, 3\nv_mul_u32_u24 v2, {CS}, v2\nv_and_b32 v3, 3, {vLANE}\nv_lshl_add_u32 v2, v3, 4, v2\nv_add_u32 v2, {L_TOEP+4096}, v2")
        a.LG("ds_write_b128 v2, v[56:59]")

    def toeplitz_build(self):
        a = self
        a.I(f"v_lshlrev_b32 v2, 4, {vTID}\nv_add_u32 v2, {L_TOEP}, v2")
        a.wait(vm=("ssm",))
        for c in range(2):
            W = lambda k: f"v{40+8*c+k}"
            b0 = 60 + 20 * c
            for i in range(4): a.I(f"v_alignbit_b32 v{b0+i}, {W(7-i)}, {W(7-i)}, 16")
            for i in range(4): a.I(f"v_alignbit_b32 v{b0+4+i}, {W(6-i)}, {W(6-i)}, 16")
            for i in range(4): a.I(f"v_bfi_b32 v{b0+8+i}, {sMASKLO}, {W(7-i)}, {W(6-i)}")
            for i in range(4): a.I(f"v_bfi_b32 v{b0+12+i}, {sMASKLO}, {W(6-i)}, {W(5-i)}")
            for q, base in ((0, b0), (2, b0 + 4), (1, b0 + 8), (3, b0 + 12)):
                a.LG(f"ds_write_b128 v2, v[{base}:{base+3}] offset:{(c * 4 + q) * CS}")

    def hop_a(self):
        a = self
        a.I(f"v_lshlrev_b32 v2, 4, {vLANE}\ns_lshl_b32 {sT0}, {sSLOT}, 14\ns_add_u32 {sT0}, {sT0}, {WS_KVT}\ns_lshl_b32 {sT1}, {sW}, 12\ns_add_u32 {sT0}, {sT0}, {sT1}")
        a.I(f"v_bfe_u32 v3, {vLANE}, 1, 1\nv_mul_u32_u24 v3, {4*PS}, v3\nv_bfe_u32 v4, {vLANE}, 2, 2\nv_mul_u32_u24 v4, {PS}, v4\nv_add_u32 v3, v3, v4")
        a.I(f"v_lshrrev_b32 v4, 4, {vLANE}\nv_lshl_add_u32 v3, v4, 4, v3\nv_and_b32 v4, 1, {vLANE}\nv_lshl_add_u32 v3, v4, 3, v3")
        a.I(f"s_lshl_b32 {sT1}, {sW}, 8\ns_add_u32 {sT1}, {sT1}, {L_UPL+512}\nv_add_u32 v3, {sT1}, v3")
        ok = a.lab("hopa_ok")
        if not self.force_slow:
            self.tagpoll("v2", sT0, (0, 1024, 2048, 3072), 8, sleep=1, limit=self.o.get("a_limit", 64), ok_label=ok)
        a.I(f"v_lshrrev_b32 v2, 5, {vLANE}\nv_lshlrev_b32 v2, 14, v2\nv_bfe_u32 v4, {vLANE}, 2, 3\nv_lshl_add_u32 v2, v4, 11, v2\nv_and_b32 v4, 3, {vLANE}\nv_lshl_add_u32 v2, v4, 4, v2")
        a.I(f"s_lshl_b32 {sT0}, {sX}, 19\ns_lshl_b32 {sT1}, {sW}, 17\ns_add_u32 {sT0}, {sT0}, {sT1}\ns_lshl_b32 {sT1}, {sR}, 6\ns_add_u32 {sT0}, {sT0}, {sT1}\ns_add_u32 {sT0}, {sT0}, {WS_KVB}")
        a.I(f"s_add_u32 {sT1}, {sT0}, 32768\ns_add_u32 {sT2}, {sT0}, 65536\ns_add_u32 {sT3}, {sT0}, 98304")
        self.tagpoll("v2", [sT0, sT1, sT2, sT3], (0, 0, 0, 0), 8, sleep=2)
        a.a.L(ok)
        for j in range(4):
            a.LG(f"ds_write_b64 v3, v[{8+4*j}:{9+4*j}] offset:{64*j}")
        a.drain(vm=False)
        a.I("s_barrier")

    def w1_dma_list(self):
        a = self
        a.I(f"s_mov_b32 {sT0}, 4682")
        for i in range(7):
            a.I(f"v_add_u32 v34, {64*i}, {vLANE}\nv_mul_u32_u24 v35, {sT0}, v34\nv_lshrrev_b32 v35, 16, v35")
            a.I(f"v_mul_u32_u24 v36, 14, v35\nv_sub_u32 v36, v34, v36")
            a.I(f"v_mul_u32_u24 v35, 3584, v35\nv_lshl_add_u32 v{148+i}, v36, 4, v35")
        a.I(f"s_mul_i32 s76, {sW}, {128*3584}\ns_mul_i32 {sT2}, {sCC}, 224\ns_add_u32 s76, s76, {sT2}")
        a.I(f"s_mul_i32 s77, {sW}, 28672")
        out = []
        for g in range(4):
            for i in range(7):
                x = f"s_add_u32 m0, s77, {L_W1 + g*7168 + i*1024}\n"
                if g > 0 and i == 0: x = f"s_add_u32 s76, s76, {32*3584}\n" + x
                out.append(x + f"buffer_load_dwordx4 v{148+i}, {SRD_W1}, s76 offen lds")
        return out

    def w2_rows(self, k):
        cp, i = divmod(k, 7)
        base = 224 * cp
        if i < 3: return [base + 32 * i + 8 * g for g in range(4)]
        if i < 6: return [base + 112 + 32 * (i - 3) + 8 * g for g in range(4)]
        return [base + 96, base + 104, base + 208, base + 216]

    def w2_setup(self):
        a = self
        a.I(f"v_bfe_u32 v5, {vLANE}, 4, 2\nv_lshlrev_b32 v5, 1, v5\nv_and_b32 v6, 7, {vLANE}\nv_xor_b32 v5, v5, v6\nv_lshlrev_b32 v5, 4, v5")
        a.I(f"v_lshrrev_b32 v6, 3, {vLANE}\nv_lshl_add_u32 v5, v6, 10, v5\ns_lshl_b32 {sT2}, {sNT}, 7\nv_add_u32 {vW2D}, {sT2}, v5")
        a.I(f"s_mul_i32 {sW2B}, {sKQ}, {448*1024}\ns_mul_i32 {sW2L}, {sW}, 12288\ns_add_u32 {sW2L}, {sW2L}, {L_SCR}")
        a.I(f"v_lshrrev_b32 v5, 2, {vLANE}\nv_lshlrev_b32 v5, 7, v5\nv_bfe_u32 v6, {vLANE}, 1, 1\nv_lshl_add_u32 v5, v6, 4, v5")
        a.I(f"v_and_b32 v6, 1, {vLANE}\nv_lshl_add_u32 v5, v6, 3, v5\nv_add_u32 v5, {sW2L}, v5\nv_bfe_u32 v6, {vLANE}, 3, 2")
        for a4 in range(4):
            a.I(f"v_xor_b32 v7, {a4}, v6\nv_lshl_add_u32 {vW2T[a4]}, v7, 5, v5")

    def w2_dma(self, k):
        out = []
        for g, st in enumerate(self.w2_rows(k)):
            out.append((f"s_add_u32 m0, {sW2L}, {(k % 3) * 4096 + g * 1024}\ns_add_u32 {sW2T}, {sW2B}, {st*1024}\n"
                        f"buffer_load_dwordx4 {vW2D}, {SRD_W2}, {sW2T} offen lds", ("w2", k)))
        return out

    def w2_tr(self, k):
        out = []
        for a4 in range(4):
            for hh in range(2):
                ar = (k * 4 + a4) * 4 + 2 * hh
                out.append((f"ds_read_b64_tr_b16 a[{ar}:{ar+1}], {vW2T[a4]} offset:{(k % 3) * 4096 + hh * 2048}", ("w2tr", k)))
        return out

    def w2_emit_dma(self, k):
        if k >= 3: self.wait(lg=(("w2tr", k - 3),))
        for x, t in self.w2_dma(k): self.VM(x, t)

    def w2_emit_tr(self, k):
        self.wait(vm=(("w2", k),))
        for x, t in self.w2_tr(k): self.LG(x, t)

    def w2_block(self, k0, k1):
        for k in range(k0, k1):
            while self.w2_issued < min(k + 3, k1):
                self.w2_emit_dma(self.w2_issued); self.w2_issued += 1
            self.w2_emit_tr(k)
            self.w2_done = k + 1

    def conv_main(self):
        a = self
        self.rowaddr("v33", "v34")
        a.I(f"s_lshl_b32 {sT0}, {sSLOT}, 13")
        for i, off in enumerate((0, 32, 64, 96)):
            a.VM(f"buffer_load_dwordx2 a[{224+2*i}:{225+2*i}], v33, {SRD_Q}, {sT0} offen offset:{off}", "q")
        bulk = self.w1_dma_list()
        a.I(f"s_and_b32 {sT1}, {sW}, 1\ns_lshr_b32 {sT4}, {sW}, 1")
        a.I(f"v_and_b32 v4, 3, {vLANE}\nv_sub_u32 v4, 3, v4\nv_mul_u32_u24 v2, {CS}, v4")
        a.I(f"v_bfe_u32 v4, {vLANE}, 2, 3\nv_lshlrev_b32 v4, 3, v4\nv_sub_u32 v2, v2, v4")
        a.I(f"v_lshrrev_b32 v5, 5, {vLANE}\nv_lshl_add_u32 v2, v5, 4, v2")
        a.I(f"s_mul_i32 {sT0}, {sT1}, {4*CS}\ns_lshl_b32 {sT5}, {sT4}, 10\ns_sub_u32 {sT0}, {sT0}, {sT5}\ns_add_u32 {sT0}, {sT0}, {L_TOEP+1080}")
        a.I(f"v_add_u32 v2, {sT0}, v2")
        a.I(f"v_mul_u32_u24 v3, {PS}, v5\nv_and_b32 v4, 31, {vLANE}\nv_lshl_add_u32 v3, v4, 4, v3")
        a.I(f"s_mul_i32 {sT0}, {sT1}, {4*PS}\ns_lshl_b32 {sT5}, {sT4}, 8\ns_sub_u32 {sT0}, {sT0}, {sT5}\ns_add_u32 {sT0}, {sT0}, {L_UPL+17*16}")
        a.I(f"v_add_u32 v3, {sT0}, v3")

        def reads(tp):
            b = 96 + 16 * (tp % 3)
            boff = (15 - (tp - 1) // 2) * 16 if tp % 2 == 1 else 2 * PS + (15 - tp // 2) * 16
            t = ("cv", tp)
            a.LG(f"ds_read_b64 v[{b}:{b+1}], v2 offset:{3040-32*tp}", t)
            a.LG(f"ds_read_b64 v[{b+2}:{b+3}], v2 offset:{3048-32*tp}", t)
            a.LG(f"ds_read_b128 v[{b+4}:{b+7}], v3 offset:{boff+512}", t)
            a.LG(f"ds_read_b128 v[{b+8}:{b+11}], v3 offset:{boff}", t)
            a.LG(f"ds_read_b64 v[{b+12}:{b+13}], v2 offset:{992-32*tp}", t)
            a.LG(f"ds_read_b64 v[{b+14}:{b+15}], v2 offset:{1000-32*tp}", t)
        reads(0); reads(1)
        for tp in range(32):
            a.wait(lg=(("cv", tp),))
            b = 96 + 16 * (tp % 3)
            ch = "0" if tp == 0 else "v[80:95]"
            cl = "0" if tp == 0 else "v[64:79]"
            a.I(f"v_mfma_f32_32x32x16_bf16 v[80:95], v[{b}:{b+3}], v[{b+4}:{b+7}], {ch}")
            if tp + 2 < 32: reads(tp + 2)
            a.I(f"v_mfma_f32_32x32x16_bf16 v[64:79], v[{b}:{b+3}], v[{b+8}:{b+11}], {cl}")
            if bulk: a.VM(bulk.pop(0), "w1")
            a.I(f"v_mfma_f32_32x32x16_bf16 v[80:95], v[{b+12}:{b+15}], v[{b+8}:{b+11}], v[80:95]")
        for x in bulk: a.VM(x, "w1")

    def conv_epilogue(self):
        a = self
        self.tags_into((144, 148, 152, 156))
        a.I("s_barrier")
        a.I(f"s_lshl_b32 {sT0}, {sW}, 13\ns_add_u32 {sT0}, {sT0}, {L_XCH}\nv_lshlrev_b32 v2, 4, {vLANE}\nv_add_u32 v3, {sT0}, v2")
        for dst in range(4):
            b = 64 + 16 * (dst >> 1) + 8 * (dst & 1)
            for h in range(2):
                a.LG(f"ds_write_b128 v3, v[{b+4*h}:{b+4*h+3}] offset:{dst*2048 + h*1024}")
        a.I(f"s_and_b32 {sT1}, {sW}, 1\ns_lshr_b32 {sT2}, {sW}, 1")
        a.I(f"v_and_b32 v4, 31, {vLANE}\nv_lshlrev_b32 v4, 4, v4\nv_lshrrev_b32 v5, 5, {vLANE}\nv_lshl_add_u32 v4, v5, 3, v4")
        a.I(f"s_mul_i32 {sT3}, {sT1}, {2*PS}\ns_lshl_b32 {sT4}, {sT2}, 9\ns_add_u32 {sT3}, {sT3}, {sT4}\ns_add_u32 {sT3}, {sT3}, {L_UPL+512}")
        a.I(f"v_add_u32 v4, {sT3}, v4")
        for c in range(2):
            for g in range(2):
                d = 96 + 4 * c + 2 * g
                a.LG(f"ds_read_b64 v[{d}:{d+1}], v4 offset:{c*4*PS + g*PS}")
        a.I(f"v_lshrrev_b32 v4, 2, {vLANE}\nv_lshlrev_b32 v4, 16, v4\nv_and_b32 v8, 3, {vLANE}\nv_lshl_add_u32 v4, v8, 4, v4")
        a.I(f"s_lshl_b32 {sT3}, {sT2}, 21\ns_lshl_b32 {sT0}, {sT1}, 15\ns_add_u32 {sT3}, {sT3}, {sT0}")
        a.I(f"s_lshl_b32 {sT0}, {sSLOT}, 6\ns_add_u32 {sT3}, {sT3}, {sT0}\ns_add_u32 s76, {sT3}, {WS_Y}")
        a.I("s_add_u32 s77, s76, 0x100000\ns_add_u32 s78, s76, 16384\ns_add_u32 s79, s77, 16384")
        a.drain(vm=False)
        a.I("s_barrier")
        a.I(f"s_lshl_b32 {sT0}, {sW}, 11\ns_add_u32 {sT0}, {sT0}, {L_XCH}\nv_add_u32 v3, {sT0}, v2")
        for src in range(4):
            for h in range(2):
                d = 104 + 8 * src + 4 * h
                a.LG(f"ds_read_b128 v[{d}:{d+3}], v3 offset:{src*8192 + h*1024}", "xch")
        a.I(f"s_lshl_b32 {sT4}, {sD0}, 16\ns_and_b32 {sT0}, {sD0}, {sMASKHI}")
        for c in range(2):
            for g in range(2):
                for h in range(2):
                    s = 96 + 4 * c + 2 * g + h
                    d = 64 + 8 * c + 4 * g + 2 * h
                    a.I(f"v_lshlrev_b32 v{d}, 16, v{s}\nv_and_b32 v{d+1}, {sMASKHI}, v{s}")
        a.I(f"v_mov_b32 v10, {sT4}\nv_mov_b32 v12, {sT0}")
        a.I(f"s_lshl_b32 {sT5}, {sW}, 11\ns_add_u32 {sT5}, {sT5}, {L_CT}")
        a.I(f"v_and_b32 v6, 31, {vLANE}\nv_lshlrev_b32 v6, 5, v6\nv_lshl_add_u32 v6, v5, 4, v6\nv_add_u32 v6, {sT5}, v6")
        a.wait(lg=("xch",))
        P = lambda r: f"v[{r}:{r+1}]"
        for c in range(2):
            for e in range(0, 8, 2):
                a.I(f"v_pk_add_f32 {P(104+8*c+e)}, {P(104+8*c+e)}, {P(104+8*(c+2)+e)}")
            for e in range(0, 8, 2):
                a.I(f"v_pk_fma_f32 {P(104+8*c+e)}, {P(64+8*c+e)}, {P(10+2*c)}, {P(104+8*c+e)} op_sel_hi:[1,0,1]")
        for e in range(8):
            a.I(f"v_cvt_pk_bf16_f32 v{80+e}, v{104+e}, v{112+e}")
        a.LG("ds_write_b128 v6, v[80:83]"); a.LG("ds_write_b128 v6, v[84:87] offset:1024")
        self.ctag_read(144, sT5)
        for j in range(4):
            a.VM(f"buffer_store_dwordx4 v[{144+4*j}:{147+4*j}], v4, {SRD_WS}, s{76+(0,1,2,3)[j]} offen sc1")
        a.I("s_barrier")

    def htouch(self):
        a = self
        a.I(f"s_lshl_b32 {sT0}, {sX}, 4\ns_lshl_b32 {sT1}, {sRH}, 3\ns_add_u32 {sT0}, {sT0}, {sT1}\ns_lshl_b32 {sT1}, {sW}, 1\ns_add_u32 {sT0}, {sT0}, {sT1}")
        a.I(f"s_mul_i32 {sT0}, {sT0}, 57344\ns_add_u32 {sT0}, {sT0}, {WS_H1}")
        a.I(f"s_lshr_b32 {sT1}, {sCC}, 1\ns_mul_i32 {sT1}, {sT1}, 7168\ns_add_u32 {sT0}, {sT0}, {sT1}")
        a.I(f"s_and_b32 {sT2}, {sCC}, 1\ns_mul_i32 {sT2}, {sT2}, 3072")
        a.I(f"v_and_b32 v5, 31, {vLANE}\nv_lshlrev_b32 v6, 7, v5\nv_add_u32 v7, {sT2}, v6")
        a.I(f"v_add_u32 v6, {6144-24*128}, v6\nv_cmp_gt_u32 vcc, 24, v5\nv_cndmask_b32 v6, v6, v7, vcc")
        a.I(f"v_lshrrev_b32 v5, 5, {vLANE}\nv_mul_u32_u24 v5, 57344, v5\nv_add_u32 v6, v6, v5")
        a.VM(f"buffer_load_dword {vDUMMY}, v6, {SRD_WS}, {sT0} offen")

    def allreduce32(self, ra, rb, tmp1, tmp2):
        a = self
        for sh in (8, 4, 2, 1):
            a.I(f"v_add_f32_dpp {ra}, {ra}, {ra} row_ror:{sh} row_mask:0xf bank_mask:0xf")
            a.I(f"v_add_f32_dpp {rb}, {rb}, {rb} row_ror:{sh} row_mask:0xf bank_mask:0xf")
        a.I(f"v_mov_b32 {tmp1}, {ra}\nv_mov_b32 {tmp2}, {rb}")
        a.I(f"v_permlane16_swap_b32 {ra}, {tmp1}\nv_permlane16_swap_b32 {rb}, {tmp2}")
        a.I(f"v_add_f32 {ra}, {ra}, {tmp1}\nv_add_f32 {rb}, {rb}, {tmp2}")

    def stats(self, xb):
        a = self
        P = lambda r: f"v[{r}:{r+1}]"
        a.I(f"v_pk_add_f32 v[8:9], {P(xb)}, {P(xb+2)}\nv_pk_mul_f32 v[10:11], {P(xb)}, {P(xb)}")
        a.I(f"v_pk_add_f32 v[12:13], {P(xb+4)}, {P(xb+6)}\nv_pk_mul_f32 v[14:15], {P(xb+2)}, {P(xb+2)}")
        a.I(f"v_pk_add_f32 v[8:9], v[8:9], {P(xb+8)}\nv_pk_fma_f32 v[10:11], {P(xb+4)}, {P(xb+4)}, v[10:11]")
        a.I(f"v_pk_add_f32 v[12:13], v[12:13], {P(xb+10)}\nv_pk_fma_f32 v[14:15], {P(xb+6)}, {P(xb+6)}, v[14:15]")
        a.I(f"v_pk_add_f32 v[8:9], v[8:9], {P(xb+12)}\nv_pk_fma_f32 v[10:11], {P(xb+8)}, {P(xb+8)}, v[10:11]")
        a.I(f"v_pk_add_f32 v[12:13], v[12:13], {P(xb+14)}\nv_pk_fma_f32 v[14:15], {P(xb+10)}, {P(xb+10)}, v[14:15]")
        a.I(f"v_pk_fma_f32 v[10:11], {P(xb+12)}, {P(xb+12)}, v[10:11]\nv_pk_fma_f32 v[14:15], {P(xb+14)}, {P(xb+14)}, v[14:15]")
        a.I("v_pk_add_f32 v[8:9], v[8:9], v[12:13]\nv_pk_add_f32 v[10:11], v[10:11], v[14:15]")
        a.I("v_add_f32 v4, v8, v9\nv_add_f32 v5, v10, v11")
        self.allreduce32("v4", "v5", "v6", "v7")
        a.I(f"v_mul_f32 v4, {f32bits(1/512)}, v4\nv_mul_f32 v5, {f32bits(1/512)}, v5")
        a.I("v_fma_f32 v5, -v4, v4, v5\nv_max_f32 v5, 0, v5")

    def r_addrs(self):
        a = self
        a.I(f"v_bfe_u32 v72, {vTID}, 2, 3\nv_lshlrev_b32 v73, 7, v72\nv_lshlrev_b32 v72, 11, v72\nv_and_b32 v74, 3, {vTID}")
        a.I(f"v_lshl_add_u32 v72, v74, 8, v72\nv_lshl_add_u32 v73, v74, 4, v73\nv_lshrrev_b32 v74, 5, {vTID}")
        a.I("v_lshl_add_u32 v72, v74, 4, v72\nv_lshl_add_u32 v73, v74, 10, v73")
        a.I(f"s_lshr_b32 s76, {sR}, 1\ns_lshl_b32 s76, s76, 14\ns_and_b32 s77, {sR}, 1\ns_lshl_b32 s77, s77, 7\ns_add_u32 s76, s76, s77\ns_add_u32 s76, s76, {sZB}")
        a.I(f"s_lshl_b32 s77, {sR}, 13\ns_add_u32 s77, s77, {sXB}")

    def r_core(self, x3store):
        a = self
        P = lambda r: f"v[{r}:{r+1}]"
        self.stats(16)
        a.I(f"v_add_f32 v5, {sEPS}, v5\nv_rsq_f32 v6, v5")
        a.I("v_mul_f32 v8, v4, v6")
        for e in range(0, 16, 2):
            a.I(f"v_pk_fma_f32 {P(48+e)}, {P(16+e)}, v[6:7], v[8:9] op_sel_hi:[1,0,0] neg_lo:[0,0,1] neg_hi:[0,0,1]")
        for e in range(0, 16, 2):
            a.I(f"v_pk_fma_f32 {P(16+e)}, {P(48+e)}, {P(32+e)}, {P(16+e)}")
        for j in range(8):
            a.I(f"v_cvt_pk_bf16_f32 v{48+j}, v{16+2*j}, v{16+2*j+1}")
        if x3store:
            self.hstore([f"buffer_store_dwordx4 v[48:51], v73, {SRD_WS}, s77 offen",
                         f"buffer_store_dwordx4 v[52:55], v73, {SRD_WS}, s77 offen offset:64"])
        else:
            for j in range(8):
                a.I(f"v_accvgpr_write_b32 a{224+j}, v{48+j}")
        self.stats(16)
        a.I(f"v_add_f32 v6, {sEPS}, v5\nv_rsq_f32 v7, v6\nv_rcp_f32 v6, v6")
        a.I(f"v_mul_f32 v6, v5, v6\nv_add_f32 v6, {sEPS}, v6\nv_rsq_f32 v6, v6\nv_mul_f32 v6, v7, v6\nv_mul_f32 v8, v4, v6")
        for e in range(0, 16, 2):
            a.I(f"v_pk_fma_f32 {P(16+e)}, {P(16+e)}, v[6:7], v[8:9] op_sel_hi:[1,0,0] neg_lo:[0,0,1] neg_hi:[0,0,1]")
        for j in range(8):
            a.I(f"v_cvt_pk_bf16_f32 v{56+j}, v{16+2*j}, v{16+2*j+1}")
        self.hstore([f"buffer_store_dwordx4 v[56:59], v72, {SRD_WS}, s76 offen",
                     f"buffer_store_dwordx4 v[60:63], v72, {SRD_WS}, s76 offen offset:1024"])

    def r1(self):
        a = self
        a.I(f"v_lshlrev_b32 v2, 4, {vLANE}\ns_lshl_b32 {sT0}, {sSLOT}, 14\ns_add_u32 {sT0}, {sT0}, {WS_Y}\ns_lshl_b32 {sT1}, {sW}, 12\ns_add_u32 {sT0}, {sT0}, {sT1}")
        a.I(f"v_and_b32 v3, 3, {vLANE}\nv_lshlrev_b32 v3, 11, v3\nv_bfe_u32 v4, {vLANE}, 2, 4\nv_lshl_add_u32 v3, v4, 2, v3")
        a.I(f"s_lshl_b32 {sT1}, {sW}, 8\ns_add_u32 {sT1}, {sT1}, {L_YT}\nv_add_u32 v3, {sT1}, v3")
        a.I("v_add_u32 v76, 64, v3\nv_add_u32 v77, 0x80, v3\nv_add_u32 v78, 0xc0, v3")
        self.rowaddr("v75", "v5")
        a.I(f"v_add_u32 v75, {L_YT}, v75")
        self.r_addrs()
        for j in range(8):
            a.I(f"v_accvgpr_read_b32 v{48+j}, a{224+j}")
        for j in range(8):
            a.I(f"v_lshlrev_b32 v{16+2*j}, 16, v{48+j}\nv_and_b32 v{16+2*j+1}, {sMASKHI}, v{48+j}")
        self.tagpoll("v2", sT0, (0, 1024, 2048, 3072), 80, sleep=4)
        a.stamp("y arrived")
        for j, ad in enumerate(("v3", "v76", "v77", "v78")):
            a.LG(f"ds_write2st64_b32 {ad}, v{80+4*j}, v{81+4*j} offset0:0 offset1:4")
        a.drain(vm=False)
        a.I("s_barrier")
        for i, off in enumerate((0, 32, 64, 96)):
            a.LG(f"ds_read_b64 v[{64+2*i}:{65+2*i}], v75 offset:{off}")
        a.drain(vm=False)
        for j in range(8):
            a.I(f"v_lshlrev_b32 v{32+2*j}, 16, v{64+j}\nv_and_b32 v{32+2*j+1}, {sMASKHI}, v{64+j}")
            a.I(f"v_accvgpr_write_b32 a{232+j}, v{64+j}")
        self.r_core(False)

    def r2(self):
        a = self
        a.I(f"v_lshlrev_b32 v2, 4, {vLANE}")
        a.I(f"s_lshl_b32 {sT0}, {sSLOT}, 14\ns_add_u32 {sT0}, {sT0}, {sOB}\ns_lshl_b32 {sT1}, {sW}, 12\ns_add_u32 {sT0}, {sT0}, {sT1}")
        for j in range(8):
            a.I(f"v_accvgpr_read_b32 v{48+j}, a{224+j}\nv_accvgpr_read_b32 v{56+j}, a{232+j}")
        for j in range(8):
            a.I(f"v_lshlrev_b32 v{16+2*j}, 16, v{48+j}\nv_and_b32 v{16+2*j+1}, {sMASKHI}, v{48+j}")
            a.I(f"v_lshlrev_b32 v{32+2*j}, 16, v{56+j}\nv_and_b32 v{32+2*j+1}, {sMASKHI}, v{56+j}")
        a.I(f"s_mul_i32 {sT5}, {sW}, 12288\ns_add_u32 {sT5}, {sT5}, {L_SCR}")
        a.I(f"v_lshlrev_b32 v76, 3, {vLANE}\nv_add_u32 v76, {sT5}, v76\nv_lshlrev_b32 v77, 5, {vLANE}\nv_add_u32 v77, {sT5}, v77")
        self.r_addrs()
        self.tagpoll("v2", sT0, (0, 1024, 2048, 3072), 80, sleep=1)
        a.stamp("o arrived")
        for j in range(4):
            a.LG(f"ds_write_b64 v76, v[{80+4*j}:{81+4*j}] offset:{512*j}")
        a.LG("ds_read_b128 v[64:67], v77"); a.LG("ds_read_b128 v[68:71], v77 offset:16")
        a.drain(vm=False)
        P = lambda r: f"v[{r}:{r+1}]"
        for j in range(8):
            a.I(f"v_lshlrev_b32 v{48+2*j}, 16, v{64+j}\nv_and_b32 v{48+2*j+1}, {sMASKHI}, v{64+j}")
        for e in range(0, 16, 2):
            a.I(f"v_pk_add_f32 {P(16+e)}, {P(16+e)}, {P(48+e)}")
        for j in range(8):
            a.I(f"v_cvt_pk_bf16_f32 v{48+j}, v{16+2*j}, v{16+2*j+1}")
        for j in range(8):
            a.I(f"v_lshlrev_b32 v{16+2*j}, 16, v{48+j}\nv_and_b32 v{16+2*j+1}, {sMASKHI}, v{48+j}")
        self.r_core(True)

    def gemm1_pre(self):
        a = self
        a.I(f"v_lshrrev_b32 v2, 4, {vLANE}\nv_lshlrev_b32 v2, 3, v2\ns_mul_i32 {sT0}, {sCC}, 224")
        for aa in range(7):
            a.VM(f"buffer_load_dwordx2 v[{64+2*aa}:{65+2*aa}], v2, {SRD_B1}, {sT0} offen offset:{32*aa}", "b1")

    def gemm1_bias(self):
        a = self
        a.wait(vm=("b1",))
        for aa in range(7):
            for rt in range(2):
                d = 8 + (aa * 2 + rt) * 4
                for h in range(2):
                    s = 64 + 2 * aa + h
                    a.I(f"v_lshlrev_b32 v{d+2*h}, 16, v{s}\nv_and_b32 v{d+2*h+1}, {sMASKHI}, v{s}")

    def gemm1(self, layer):
        a = self
        ZB = 120; WB = 64
        a.I(f"v_lshlrev_b32 v2, 4, {vLANE}")
        a.I(f"s_lshl_b32 {sT0}, {sRH}, 17\ns_lshl_b32 {sT1}, {sW}, 15\ns_add_u32 {sT0}, {sT0}, {sT1}\ns_add_u32 {sT0}, {sT0}, {sZB}")
        a.I(f"s_add_u32 {sT1}, {sT0}, 16384")
        PD = self.o.get("g1_pd", 4)

        def zload(t, rt):
            d = ZB + (t * 2 + rt) * 4
            x = f"buffer_load_dwordx4 v[{d}:{d+3}], v2, {SRD_WS}, {sT0 if rt == 0 else sT1} offen offset:{(t%4)*1024} sc1"
            if rt == 1 and t % 4 == 3:
                x += f"\ns_add_u32 {sT0}, {sT0}, 4096\ns_add_u32 {sT1}, {sT1}, 4096"
            a.VM(x, ("z", layer, t))
        for t in range(PD):
            for rt in range(2): zload(t, rt)
        a.I(f"v_lshrrev_b32 v3, 2, {vLANE}\nv_mul_u32_u24 v3, 224, v3\nv_and_b32 v4, 3, {vLANE}\nv_lshl_add_u32 v3, v4, 3, v3\nv_add_u32 v4, 57344, v3")

        def wread(t, aa, hh):
            b = WB + 28 * (t % 2)
            base, tt = ("v3", t) if t < 8 else ("v4", t - 8)
            off = L_W1 + (32 * tt + 16 * hh) * 224 + 32 * aa
            a.LG(f"ds_read_b64_tr_b16 v[{b+4*aa+2*hh}:{b+4*aa+2*hh+1}], {base} offset:{off}", ("w1", layer, t, aa))
        for aa in range(7):
            for hh in range(2): wread(0, aa, hh)
        w2 = layer == 0
        kmax = self.o.get("w2_kg1", 11)
        dma_at = {}
        for t in range(16):
            b = WB + 28 * (t % 2)
            pend_tr, pend_dma = [], []
            if w2:
                LAG = self.o.get("w2_lag", 2)
                k = self.w2_done
                if k < self.w2_issued and k < kmax and t - dma_at.get(k, -99) >= LAG:
                    pend_tr = self.w2_tr(k); trk = k; self.w2_done += 1
                if self.w2_issued < 14 and self.w2_issued - 3 < self.w2_done - (1 if pend_tr else 0) and self.w2_issued < kmax + 3:
                    kd = self.w2_issued
                    pend_dma = self.w2_dma(kd); dma_at[kd] = t; self.w2_issued += 1
            for aa in range(7):
                if aa == 0:
                    a.wait(vm=(("z", layer, t),), lg=(("w1", layer, t, aa),))
                else:
                    a.wait(lg=(("w1", layer, t, aa),))
                for rt in range(2):
                    d = 8 + (aa * 2 + rt) * 4
                    z = ZB + (t * 2 + rt) * 4
                    a.I(f"v_mfma_f32_16x16x32_bf16 v[{d}:{d+3}], v[{b+4*aa}:{b+4*aa+3}], v[{z}:{z+3}], v[{d}:{d+3}]")
                    if t + 1 < 16: wread(t + 1, aa, rt)
                    if aa == 1 and t + PD < 16: zload(t + PD, rt)
                if aa == 0 and pend_dma:
                    kd = pend_dma[0][1][1]
                    if kd >= 3: a.wait(lg=(("w2tr", kd - 3),))
                if aa in (0, 2, 4, 6) and pend_dma:
                    x, tg = pend_dma.pop(0); a.VM(x, tg)
                if aa == 2 and pend_tr:
                    a.wait(vm=(("w2", trk),))
                if aa >= 3 and pend_tr:
                    for _ in range(2):
                        x, tg = pend_tr.pop(0); a.LG(x, tg)
        self.stamp("g1 mfma done")
        c1 = -2.0 * 0.7978845608028654 * 1.4426950408889634
        c2 = c1 * 0.044715
        a.I(f"v_mov_b32 v64, {f32bits(c2)}\nv_mov_b32 v66, {f32bits(c1)}\nv_mov_b32 v68, 1.0")
        a.I(f"s_lshl_b32 {sT0}, {sX}, 4\ns_lshl_b32 {sT1}, {sRH}, 3\ns_add_u32 {sT0}, {sT0}, {sT1}\ns_lshl_b32 {sT1}, {sW}, 1\ns_add_u32 {sT0}, {sT0}, {sT1}")
        a.I(f"s_mul_i32 {sT0}, {sT0}, 57344\ns_add_u32 {sT0}, {sT0}, {sHB}")
        a.I(f"s_lshr_b32 {sT1}, {sCC}, 1\ns_mul_i32 {sT1}, {sT1}, 7168\ns_add_u32 {sT0}, {sT0}, {sT1}")
        a.I(f"s_and_b32 {sT2}, {sCC}, 1\ns_mul_i32 {sT1}, {sT2}, 3072\ns_add_u32 {sT1}, {sT0}, {sT1}")
        a.I(f"s_lshl_b32 {sT2}, {sT2}, 3\ns_add_u32 {sT2}, {sT0}, {sT2}\ns_add_u32 {sT2}, {sT2}, 6144")
        a.I(f"s_add_u32 {sT3}, {sT1}, 57344\ns_add_u32 {sT4}, {sT2}, 57344")
        P = lambda r: f"v[{r}:{r+1}]"

        def gelu(d, t0):
            for h in (0, 2): a.I(f"v_pk_mul_f32 {P(t0+h)}, {P(d+h)}, {P(d+h)}")
            for h in (0, 2): a.I(f"v_pk_fma_f32 {P(t0+h)}, {P(t0+h)}, v[64:65], v[66:67] op_sel_hi:[1,0,0]")
            for h in (0, 2): a.I(f"v_pk_mul_f32 {P(t0+h)}, {P(t0+h)}, {P(d+h)}")
            for j in range(4): a.I(f"v_exp_f32 v{t0+j}, v{t0+j}")
            for h in (0, 2): a.I(f"v_pk_add_f32 {P(t0+h)}, {P(t0+h)}, v[68:69] op_sel_hi:[1,0]")
            for j in range(4): a.I(f"v_rcp_f32 v{t0+j}, v{t0+j}")
            for h in (0, 2): a.I(f"v_pk_mul_f32 {P(d+h)}, {P(d+h)}, {P(t0+h)}")
        lpure = a.lab("gp");
        tail = []
        if w2:
            for k in range(self.w2_done, 14): tail.append(k)
        n = 0
        for rt in range(2):
            so1 = sT1 if rt == 0 else sT3
            so2 = sT2 if rt == 0 else sT4
            for i in range(4):
                tiles = (2 * i, 2 * i + 1) if i < 3 else (6,)
                p = 80 + (rt * 4 + i) * 4
                for h, aa in enumerate(tiles):
                    d = 8 + (aa * 2 + rt) * 4
                    gelu(d, 72 + 4 * (n % 2)); n += 1
                    a.I(f"v_cvt_pk_bf16_f32 v{p+2*h}, v{d}, v{d+1}\nv_cvt_pk_bf16_f32 v{p+2*h+1}, v{d+2}, v{d+3}")
                if i < 3:
                    self.hstore([f"buffer_store_dwordx4 v[{p}:{p+3}], v2, {SRD_WS}, {so1} offen offset:{i*1024}"])
                else:
                    self.hstore([f"buffer_store_dwordx2 v[{p}:{p+1}], v2, {SRD_WS}, {so2} offen"])
                if tail:
                    k = tail[0]
                    if self.w2_issued <= k:
                        self.w2_emit_dma(self.w2_issued); self.w2_issued += 1
                    else:
                        self.w2_emit_tr(k); self.w2_done = k + 1; tail.pop(0)
                        if self.w2_issued < 14:
                            self.w2_emit_dma(self.w2_issued); self.w2_issued += 1
        for k in tail:
            while self.w2_issued <= min(k + 2, 13):
                self.w2_emit_dma(self.w2_issued); self.w2_issued += 1
            self.w2_emit_tr(k); self.w2_done = k + 1

    def gemm2_pre(self, final):
        a = self
        a.I(f"v_lshrrev_b32 v5, 4, {vLANE}\nv_lshlrev_b32 v5, 3, v5\ns_lshl_b32 {sT2}, {sNT}, 7")
        for aa in range(4):
            a.VM(f"buffer_load_dwordx2 v[{216+2*aa}:{217+2*aa}], v5, {SRD_B2}, {sT2} offen offset:{32*aa}", "b2")
        if final:
            a.I(f"v_and_b32 v4, 15, {vLANE}\nv_lshlrev_b32 v4, 10, v4\nv_lshrrev_b32 v5, 4, {vLANE}\nv_lshl_add_u32 v4, v5, 4, v4")
            a.I(f"s_lshl_b32 {sT2}, {sRQ}, 16\ns_lshl_b32 {sT3}, {sW}, 14\ns_add_u32 {sT2}, {sT2}, {sT3}")
            a.I(f"s_lshl_b32 {sT3}, {sNT}, 7\ns_add_u32 {sT2}, {sT2}, {sT3}\ns_add_u32 {sT2}, {sT2}, {sXB}")
            a.VM(f"buffer_load_dwordx4 v[208:211], v4, {SRD_WS}, {sT2} offen sc1", "x3")
            a.VM(f"buffer_load_dwordx4 v[212:215], v4, {SRD_WS}, {sT2} offen offset:64 sc1", "x3")
        else:
            self.tags_into((224, 228, 232, 236))

    def gemm2(self, final):
        a = self
        lay = 1 if final else 0
        a.I(f"v_lshlrev_b32 v2, 4, {vLANE}")
        a.I(f"s_lshl_b32 {sT0}, {sX}, 4\ns_lshl_b32 {sT1}, {sRQ}, 2\ns_add_u32 {sT0}, {sT0}, {sT1}\ns_mul_i32 {sT0}, {sT0}, 57344")
        a.I(f"s_mul_i32 {sT1}, {sKQ}, 14336\ns_add_u32 {sT0}, {sT0}, {sT1}\ns_add_u32 {sT0}, {sT0}, {sHB}")
        PD = self.o.get("g2_pd", 14)
        for idx in range(4):
            a.I(f"s_add_u32 {sT1}, {sW}, {1+idx}\ns_and_b32 {sT1}, {sT1}, 3\ns_mul_i32 {sT1}, {sT1}, 57344\ns_add_u32 s{76+idx}, {sT1}, {sT0}")

        def hload(n):
            idx, k = divmod(n, 14)
            b = 40 + 4 * (n % 42)
            x = f"s_add_u32 s{76+idx}, s{76+idx}, 4096\n" if (k % 4 == 0 and k > 0) else ""
            a.VM(x + f"buffer_load_dwordx4 v[{b}:{b+3}], v2, {SRD_WS}, s{76+idx} offen offset:{(k%4)*1024} sc1", ("h", lay, n))
        for n in range(PD): hload(n)
        a.I(f"v_lshlrev_b32 v3, 4, {vLANE}")
        for idx in range(3):
            a.I(f"s_add_u32 {sT1}, {sW}, {1+idx}\ns_and_b32 {sT1}, {sT1}, 3\ns_mul_i32 {sT1}, {sT1}, 12288\ns_add_u32 {sT1}, {sT1}, {L_SCR + (2-idx)*4096}")
            a.I(f"v_add_u32 v{5+idx}, {sT1}, v3")
        a.I(f"s_mul_i32 {sT1}, {sW}, 12288\ns_add_u32 {sT1}, {sT1}, {L_SCR}\nv_add_u32 v4, {sT1}, v3")
        issued = PD
        for idx in range(4):
            acc = 8 + 16 * (idx % 2)
            for k in range(14):
                n = idx * 14 + k
                b = 40 + 4 * (n % 42)
                a.wait(vm=(("h", lay, n),))
                for aa in range(4):
                    ar = (k * 4 + aa) * 4
                    d = acc + 4 * aa
                    c = "0" if k == 0 else f"v[{d}:{d+3}]"
                    a.I(f"v_mfma_f32_16x16x32_bf16 v[{d}:{d+3}], a[{ar}:{ar+3}], v[{b}:{b+3}], {c}")
                    if aa == 1 and issued < 56:
                        hload(issued); issued += 1
                if idx >= 1 and k in (1, 2, 3, 4):
                    pacc = 8 + 16 * ((idx - 1) % 2)
                    aa = k - 1
                    a.LG(f"ds_write_b128 v{5+idx-1}, v[{pacc+4*aa}:{pacc+4*aa+3}] offset:{aa*1024}")
        self.stamp("g2 mfma done")
        P = lambda r: f"v[{r}:{r+1}]"
        for aa in range(4):
            for h in range(2):
                s = 216 + 2 * aa + h
                a.I(f"v_lshlrev_b32 v{88+4*aa+2*h}, 16, v{s}\nv_and_b32 v{88+4*aa+2*h+1}, {sMASKHI}, v{s}")
        if final:
            for j in range(8):
                a.I(f"v_lshlrev_b32 v{104+2*j}, 16, v{208+j}\nv_and_b32 v{104+2*j+1}, {sMASKHI}, v{208+j}")
        a.drain(vm=False)
        a.I("s_barrier")
        for s in range(3):
            for aa in range(4):
                d = 40 + s * 16 + aa * 4
                a.LG(f"ds_read_b128 v[{d}:{d+3}], v4 offset:{s*4096 + aa*1024}", ("red", s))
        for e in range(0, 16, 2):
            a.I(f"v_pk_add_f32 {P(24+e)}, {P(24+e)}, {P(88+e)}")
        for s in range(3):
            a.wait(lg=(("red", s),))
            for e in range(0, 16, 2):
                a.I(f"v_pk_add_f32 {P(24+e)}, {P(24+e)}, {P(40+16*s+e)}")
        for j in range(8):
            a.I(f"v_cvt_pk_bf16_f32 v{40+j}, v{24+2*j}, v{24+2*j+1}")
        if not final:
            a.I(f"v_lshrrev_b32 v4, 4, {vLANE}\nv_lshlrev_b32 v4, 11, v4\nv_and_b32 v5, 15, {vLANE}\nv_lshl_add_u32 v4, v5, 4, v4")
            a.I(f"s_lshl_b32 {sT2}, {sX}, 19\ns_lshl_b32 {sT3}, {sRQ}, 17\ns_add_u32 {sT2}, {sT2}, {sT3}\ns_lshl_b32 {sT3}, {sW}, 15\ns_add_u32 {sT2}, {sT2}, {sT3}")
            a.I(f"s_lshl_b32 {sT3}, {sNT}, 8\ns_add_u32 {sT2}, {sT2}, {sT3}\ns_add_u32 {sT2}, {sT2}, {sOB}")
            a.I(f"s_add_u32 {sT3}, {sT2}, 8192\ns_add_u32 {sT4}, {sT2}, 16384\ns_add_u32 {sT1}, {sT2}, 24576")
            a.I(f"s_mul_i32 {sT5}, {sW}, 12288\ns_add_u32 {sT5}, {sT5}, {L_SCR}")
            a.I(f"v_lshlrev_b32 v6, 5, {vLANE}\nv_add_u32 v6, {sT5}, v6")
            a.LG("ds_write_b128 v6, v[40:43]"); a.LG("ds_write_b128 v6, v[44:47] offset:16")
            a.I(f"v_bfe_u32 v7, {vLANE}, 2, 2\nv_lshlrev_b32 v7, 9, v7\nv_lshrrev_b32 v6, 4, {vLANE}\nv_lshl_add_u32 v7, v6, 5, v7\nv_and_b32 v6, 3, {vLANE}\nv_lshl_add_u32 v7, v6, 3, v7\nv_add_u32 v7, {sT5}, v7")
            self.ctag_read(224, sT5, offs=(0, 128, 256, 384), vaddr="v7")
            self.hstore([f"buffer_store_dwordx4 v[{224+4*j}:{227+4*j}], v4, {SRD_WS}, {(sT2, sT3, sT4, sT1)[j]} offen" for j in range(4)])
        else:
            for j in range(8):
                a.I(f"v_lshlrev_b32 v{24+2*j}, 16, v{40+j}\nv_and_b32 v{24+2*j+1}, {sMASKHI}, v{40+j}")
            for e in range(0, 16, 2):
                a.I(f"v_pk_add_f32 {P(24+e)}, {P(24+e)}, {P(104+e)}")
            for j in range(8):
                a.I(f"v_cvt_pk_bf16_f32 v{40+j}, v{24+2*j}, v{24+2*j+1}")
            for ap in range(2):
                b = 40 + 4 * ap
                a.I(f"v_permlane16_swap_b32 v{b}, v{b+2}\nv_permlane16_swap_b32 v{b+1}, v{b+3}")
            a.I(f"v_and_b32 v4, 15, {vLANE}\nv_lshlrev_b32 v4, 10, v4\nv_bfe_u32 v5, {vLANE}, 4, 1\nv_lshl_add_u32 v4, v5, 5, v4\nv_lshrrev_b32 v5, 5, {vLANE}\nv_lshl_add_u32 v4, v5, 4, v4")
            a.I(f"s_lshl_b32 {sT2}, {sX}, 18\ns_lshl_b32 {sT3}, {sRQ}, 16\ns_add_u32 {sT2}, {sT2}, {sT3}\ns_lshl_b32 {sT3}, {sW}, 14\ns_add_u32 {sT2}, {sT2}, {sT3}")
            a.I(f"s_lshl_b32 {sT3}, {sNT}, 7\ns_add_u32 {sT2}, {sT2}, {sT3}")
            fl = " sc1" if self.o.get("out_sc1", 0) else ""
            for ap in range(2):
                a.VM(f"buffer_store_dwordx4 v[{40+4*ap}:{43+4*ap}], v4, {SRD_OUT}, {sT2} offen offset:{64*ap}{fl}")

    def build(self):
        a = self
        self.stamps = []
        self.w2_issued = 0; self.w2_done = 0
        a.prologue()
        a.p0()
        a.stamp("p0 computed")
        if not self.o.get("ssm_early", 1): a.ssm_loads()
        if self.o.get("htouch", 1) == 2: a.htouch()
        a.I(f"s_lshl_b32 {sT0}, {sSLOT}, 2\ns_add_u32 {sT0}, {sT0}, {WS_FLAGS + HOP_REG * 0x400}")
        a.I(f"s_or_b32 {sT1}, {sT}, {sXCC}\nv_mov_b32 v6, {sT1}\ns_mov_b64 exec, 1")
        a.VM(f"buffer_store_dword v6, off, {SRD_WS}, {sT0} sc1")
        a.I("s_mov_b64 exec, -1")
        a.toeplitz_zero()
        a.toeplitz_build()
        a.stamp("toeplitz")
        a.maybe_stop(1)
        a.hop_a()
        a.I(f"s_xor_b32 {sTH}, {sTH}, 0x11111111")
        a.stamp("u loaded")
        a.conv_main()
        a.stamp("conv main")
        a.conv_epilogue()
        a.stamp("y stored")
        a.maybe_stop(2)
        a.w2_setup()
        if self.o.get("htouch", 1) == 1: a.htouch()
        if self.o.get("w2share", 0):
            a.I(f"v_lshlrev_b32 v146, 7, {vTID}\nv_min_u32 v147, 191, {vTID}\nv_lshlrev_b32 v147, 7, v147")
            a.I(f"s_mul_i32 s76, {sR}, 57344\ns_add_u32 s77, s76, 32768")
            a.VM(f"buffer_load_dword {vDUMMY}, v146, {SRD_W2}, s76 offen")
            a.VM(f"buffer_load_dword {vDUMMY}, v147, {SRD_W2}, s77 offen")
        a.w2_block(0, self.o.get("w2k0", 2))
        a.stamp("w2 a")
        a.I(f"s_lshl_b32 {sT5}, {sX}, 5")
        a.poll(HOP_REG, sT5, 32, purity=True)
        a.I(f"s_lshl_b32 {sT0}, {sX}, 18\ns_add_u32 {sZB}, {sT0}, {WS_Z1}\ns_add_u32 {sXB}, {sT0}, {WS_X3}\ns_mov_b32 {sOB}, {WS_O}\ns_mov_b32 {sHB}, {WS_H1}")
        a.I(f"s_lshl_b32 {sT0}, {sX}, 19\ns_add_u32 {sT0}, {sT0}, {WS_KVT}\ns_add_u32 {sT1}, {sT0}, 0x40000")
        a.I(f"s_cmp_eq_u32 {sPURE}, 1\ns_cmov_b32 {sZB}, {sT0}\ns_cmov_b32 {sXB}, {sT1}\ns_cmov_b32 {sOB}, {WS_Y}")
        a.drain()
        a.I("s_barrier")
        a.r1()
        skip = a.lab("ep")
        a.I(f"s_or_b32 {sT0}, {sSLOT}, {sW}\ns_cmp_lg_u32 {sT0}, 0\ns_cbranch_scc1 {skip}")
        a.I(f"v_mov_b32 v2, {sT}\ns_mov_b64 exec, 1\nbuffer_store_dword v2, off, {SRD_WS}, 0 sc1\ns_mov_b64 exec, -1")
        a.a.L(skip)
        a.signal(HOP_C1)
        a.I(f"s_xor_b32 {sTH}, {sTH}, 0x33333333")
        a.stamp("r1 done")
        a.maybe_stop(3)
        for layer in range(2):
            hopc = HOP_C1 if layer == 0 else HOP_C2
            hopd = HOP_D1 if layer == 0 else HOP_D2
            a.gemm1_pre()
            if layer == 0:
                a.w2_block(self.w2_done, self.o.get("w2k1", 4))
                a.stamp("w2 b")
            a.gemm1_bias()
            a.I(f"s_lshl_b32 {sT5}, {sX}, 5\ns_lshl_b32 {sT4}, {sRH}, 4\ns_add_u32 {sT5}, {sT5}, {sT4}")
            a.poll(hopc, sT5, 16)
            a.stamp("c polled")
            a.gemm1(layer)
            a.signal(hopd)
            a.stamp("g1 done")
            a.maybe_stop(4 + 3 * layer)
            a.gemm2_pre(layer == 1)
            a.I(f"s_lshl_b32 {sT5}, {sX}, 5\ns_lshl_b32 {sT4}, {sRH}, 4\ns_add_u32 {sT5}, {sT5}, {sT4}")
            a.poll(hopd, sT5, 16)
            a.stamp("d polled")
            a.gemm2(layer == 1)
            if layer == 0:
                a.stamp("g2 done")
                a.maybe_stop(5)
                a.I(f"s_cmp_eq_u32 {sPURE}, 1\ns_cbranch_scc1 L_keepbuf\ns_add_u32 {sZB}, {sZB}, {WS_Z3 - WS_Z1}\ns_mov_b32 {sHB}, {WS_H3}")
                a.a.L("L_keepbuf")
                a.r2()
                a.signal(HOP_C2)
                a.stamp("r2 done")
                a.maybe_stop(6)
        a.a.L("L_end")
        if self.prof:
            a.I("s_waitcnt vmcnt(0)")
            a.stamp("end")
            skip = a.lab("pf")
            a.I(f"s_cmp_lg_u32 {sW}, 0\ns_cbranch_scc1 {skip}")
            a.I(f"v_writelane_b32 v255, {sPURE}, 62")
            a.I("s_memrealtime s[0:1]\ns_waitcnt lgkmcnt(0)\nv_writelane_b32 v255, s0, 61")
            a.I(f"v_lshlrev_b32 v2, 2, {vLANE}\ns_lshl_b32 {sT0}, {sSLOT}, 8\ns_add_u32 {sT0}, {sT0}, {WS_PROF}")
            a.I(f"buffer_store_dword v255, v2, {SRD_WS}, {sT0} offen")
            a.a.L(skip)
        if self.o.get("fixed_us"):
            a.I("s_waitcnt vmcnt(0)\nv_readfirstlane_b32 s3, v253")
            a.a.L("L_fix")
            a.I(f"s_memrealtime s[86:87]\ns_waitcnt lgkmcnt(0)\ns_sub_u32 s86, s86, s3\ns_cmp_lt_u32 s86, {self.o.get('fixed_us', 0) * 100}\ns_cbranch_scc1 L_fix")
        a.a.L("L_exit")
        a.I("s_endpgm")
        a.a.L("L_codeend")
        body = a.a.finish()
        hdr = f"""; Fused persistent kernel: causal long conv (MFMA Toeplitz) + 2x (LN, LN, MLP) with in-launch hand-offs
; @launch grid=(256,1,1) block=(256,1,1) lds={LDS_BYTES}
.amdgcn_target "amdgcn-amd-amdhsa--gfx950"
.text
.globl {NAME}
.p2align 8
.type {NAME},@function
{NAME}:
"""
        ftr = f""".section .rodata,"a"
.p2align 6
.amdhsa_kernel {NAME}
  .amdhsa_next_free_vgpr 512
  .amdhsa_next_free_sgpr 102
  .amdhsa_accum_offset 256
  .amdhsa_group_segment_fixed_size 0
  .amdhsa_kernarg_size 112
  .amdhsa_user_sgpr_count 2
  .amdhsa_user_sgpr_kernarg_segment_ptr 1
  .amdhsa_system_sgpr_workgroup_id_x 1
.end_amdhsa_kernel
"""
        return hdr + body + ftr


if __name__ == "__main__":
    import argparse
    ap = argparse.ArgumentParser()
    ap.add_argument("--stop", type=int, default=99)
    ap.add_argument("--prof", action="store_true")
    ap.add_argument("--slow", action="store_true")
    ap.add_argument("--opt", action="append", default=[])
    ap.add_argument("-o", default="k.s")
    args = ap.parse_args()
    opts = {}
    for o in args.opt:
        k, v = o.split("="); opts[k] = int(v)
    g = Gen(stop=args.stop, prof=args.prof, force_slow=args.slow, opts=opts)
    txt = g.build()
    open(args.o, "w").write(txt)
    print("lines", txt.count("\n"), "nop insertions", g.a.n_nops, "w2 done", g.w2_done, g.w2_issued)
    if args.prof: open(args.o + ".stamps", "w").write(",".join(g.stamps))
```
